```python
import torch

def _softmax(x, axis=-1):
    return torch.softmax(x, dim=axis)

def _gelu(x):
    return torch.nn.functional.gelu(x, approximate='tanh')

def _silu(x):
    return torch.nn.functional.silu(x)

def _sigmoid(x):
    return torch.sigmoid(x)

def _layernorm(x, axis=-1, eps=1e-05):
    m = x.mean(dim=axis, keepdim=True)
    v = x.var(dim=axis, keepdim=True, unbiased=False)
    return (x - m) / torch.sqrt(v + eps)

def _scatter_add(tgt, idx, src, axis=0):
    return tgt.clone().index_add_(axis, idx, src)

def _segment_sum(src, seg, n):
    out = torch.zeros((n,) + src.shape[1:], dtype=src.dtype)
    return out.index_add_(0, seg, src)

def _pad(x, pw):
    flat = tuple((v for pair in reversed(pw) for v in pair))
    return torch.nn.functional.pad(x, flat)
kernel_name = 'adaLN_cond__compressed_kv_cla__glu_gated_glu__decode'

def setup_inputs():

    _w = lambda a: (lambda t: t.to(torch.bfloat16) if t.is_floating_point() else t)(torch.as_tensor(a))

    def _A_setup():
        B, H, Sq, Sk, D, M = (4, 32, 1, 4096, 128, 512)
        Dc = 4 * D
        return {'x': _w((lambda *s: torch.randn(*s, dtype=torch.bfloat16) * 0.05)(B, Sq, M)), 'c_kv': _w((lambda *s: torch.randn(*s, dtype=torch.bfloat16) * 1.6)(B, Sk, Dc)), 'w_q': _w((lambda *s: torch.randn(*s, dtype=torch.bfloat16) * 1.6)(M, H, D) * M ** (-0.5)), 'w_uk': _w((lambda *s: torch.randn(*s, dtype=torch.bfloat16) * 1.6)(Dc, H, D) * Dc ** (-0.5)), 'w_uv': _w((lambda *s: torch.randn(*s, dtype=torch.bfloat16) * 1.6)(Dc, H, D) * Dc ** (-0.5)), 'w_o': _w((lambda *s: torch.randn(*s, dtype=torch.bfloat16) * 1.6)(H, D, M) * (H * D) ** (-0.5))}
    _A_in = _A_setup()

    def _B_setup():
        B, S, D, F = (4, 1, 512, 1792)
        return {'x': _w((lambda *s: torch.randn(*s, dtype=torch.bfloat16) * 0.05)(B, S, D)), 'w_gate': _w((lambda *s: torch.randn(*s, dtype=torch.bfloat16) * 0.1)(D, F)), 'w_up': _w((lambda *s: torch.randn(*s, dtype=torch.bfloat16) * 0.05)(D, F)), 'w_down': _w((lambda *s: torch.randn(*s, dtype=torch.bfloat16) * 0.05)(F, D))}
    _B_in = _B_setup()
    return {'A_x': _A_in['x'], 'A_c_kv': _A_in['c_kv'], 'A_w_q': _A_in['w_q'], 'A_w_uk': _A_in['w_uk'], 'A_w_uv': _A_in['w_uv'], 'A_w_o': _A_in['w_o'], 'B_x': _B_in['x'], 'B_w_gate': _B_in['w_gate'], 'B_w_up': _B_in['w_up'], 'B_w_down': _B_in['w_down'], 'c': _w((lambda *s: torch.randn(*s, dtype=torch.bfloat16) * 0.2)(4, 512) * 8.0), 'w_mod': _w((lambda *s: torch.randn(*s, dtype=torch.bfloat16) * 0.2)(512, 6 * 512) * 512 ** (-0.5) * 8.0)}

def reference(A_x, A_c_kv, A_w_q, A_w_uk, A_w_uv, A_w_o, B_x, B_w_gate, B_w_up, B_w_down, c, w_mod):

    def _A_ref(x, c_kv, w_q, w_uk, w_uv, w_o):
        B, Sq, M = (x.shape[0], x.shape[1], x.shape[2])
        Sk = c_kv.shape[1]
        H, D = (w_q.shape[1], w_q.shape[2])
        q = torch.einsum('bqm,mhd->bhqd', x, w_q)
        k = torch.einsum('bkc,chd->bhkd', c_kv, w_uk)
        v = torch.einsum('bkc,chd->bhkd', c_kv, w_uv)
        scores = torch.einsum('bhqd,bhkd->bhqk', q, k) * D ** (-0.5)
        off = Sk - Sq
        qi = torch.arange(Sq)[:, None]
        kj = torch.arange(Sk)[None, :]
        cmask = kj <= qi + off
        scores = torch.where(cmask[None, None], scores, -1000000000.0)
        p = _softmax(scores, axis=-1)
        ctx = torch.einsum('bhqk,bhkd->bhqd', p, v)
        return torch.einsum('bhqd,hdm->bqm', ctx, w_o)

    def _B_ref(x, w_gate, w_up, w_down):
        g = torch.einsum('bsd,df->bsf', x, w_gate)
        u = torch.einsum('bsd,df->bsf', x, w_up)
        h = _sigmoid(g) * u
        return torch.einsum('bsf,fd->bsd', h, w_down)
    x = A_x
    mod = (_silu(c) @ w_mod).reshape(c.shape[0], 6, 1, -1)
    sa, ca, ga, sb, cb, gb = (mod[:, 0].clone(), mod[:, 1].clone(), mod[:, 2].clone(), mod[:, 3].clone(), mod[:, 4].clone(), mod[:, 5].clone())
    h = _layernorm(x, axis=-1) * (1 + ca) + sa
    x = x + ga * _A_ref(h, A_c_kv, A_w_q, A_w_uk, A_w_uv, A_w_o)
    h = _layernorm(x, axis=-1) * (1 + cb) + sb
    x = x + gb * _B_ref(h, B_w_gate, B_w_up, B_w_down)
    return x
```

```python
K = 'adaLN_cond__compressed_kv_cla__glu_gated_glu__decode'
HDR = open('cdna_kernels/' + K + '.s.ref').read().split('; Override launch geometry')[0] if True else ''
class Asm:
    def __init__(self):
        self.L = []
        self.nlab = 0
    def __call__(self, s, *a):
        if a: s = s % a
        for line in s.split('\n'):
            self.L.append('    ' + line.strip() if not line.strip().endswith(':') else line.strip())
    def label(self, p='L'):
        self.nlab += 1
        return '%s_%d' % (p, self.nlab)
    def text(self):
        return '\n'.join(self.L) + '\n'
def kernel_wrap(name, body, vgpr, sgpr=102, accum=None):
    if accum is None: accum = (vgpr + 3) // 4 * 4
    t = '.text\n.globl %s\n.p2align 8\n.type %s,@function\n%s:\n' % (name, name, name)
    t += body
    d = '.section .rodata,"a"\n.p2align 6\n.amdhsa_kernel %s\n  .amdhsa_next_free_vgpr %d\n  .amdhsa_next_free_sgpr %d\n  .amdhsa_accum_offset %d\n  .amdhsa_group_segment_fixed_size 0\n  .amdhsa_kernarg_size 120\n  .amdhsa_user_sgpr_count 2\n  .amdhsa_user_sgpr_kernarg_segment_ptr 1\n  .amdhsa_system_sgpr_workgroup_id_x 1\n  .amdhsa_float_denorm_mode_32 3\n.end_amdhsa_kernel\n' % (name, vgpr, sgpr, accum)
    return t, d
def file_wrap(launch_lines, kernels):
    s = HDR + '\n'.join(launch_lines) + '\n.amdgcn_target "amdgcn-amd-amdhsa--gfx950"\n'
    for t, d in kernels: s += t
    for t, d in kernels: s += d
    return s
```

```python
import re
TRANS = ('v_exp_f32', 'v_log_f32', 'v_rcp_f32', 'v_rsq_f32', 'v_sqrt_f32', 'v_sin_f32', 'v_cos_f32', 'v_rcp_iflag_f32')
def regs(tok):
    tok = tok.strip()
    tok = tok.replace('abs(', '').replace(')', '').lstrip('-').strip('|')
    m = re.fullmatch(r'([vas])\[(\d+):(\d+)\]', tok)
    if m: return [(m.group(1), i) for i in range(int(m.group(2)), int(m.group(3)) + 1)]
    m = re.fullmatch(r'([vas])(\d+)', tok)
    if m: return [(m.group(1), int(m.group(2)))]
    if tok == 'vcc': return [('s', 'vcc_lo'), ('s', 'vcc_hi')]
    if tok in ('vcc_lo', 'vcc_hi', 'm0', 'exec_lo', 'exec_hi'): return [('s', tok)]
    if tok == 'exec': return [('s', 'exec_lo'), ('s', 'exec_hi')]
    return []
class Ins:
    def __init__(self, text):
        self.text = text
        t = text.split(';')[0].strip()
        self.label = t[:-1] if t.endswith(':') else None
        self.op = None; self.defs = []; self.uses = []; self.kind = 'none'; self.ws = 0
        if self.label is not None or not t or t.startswith('.'):
            return
        parts = t.split(None, 1)
        op = parts[0]; self.op = op
        rest = parts[1] if len(parts) > 1 else ''
        ops = [o.strip() for o in rest.split(',')] if rest else []
        mods = ''
        if ops:
            l = ops[-1].split()
            if l:
                ops[-1] = l[0]; mods = ' '.join(l[1:])
        self.mods = rest
        self.ws = 1
        ops = [o.split()[0] for o in ops if o]
        R = [regs(o) for o in ops]
        base = re.sub(r'_(e32|e64|dpp|sdwa)$', '', op)
        self.base = base
        if op == 's_nop':
            self.ws = int(ops[0], 0) + 1; self.kind = 'salu'; return
        if op.startswith('v_mfma'):
            self.kind = 'mfma'; self.defs = R[0]; self.A = R[1]; self.B = R[2]; self.C = R[3] if len(R) > 3 else []
            self.uses = self.A + self.B + self.C
            self.passes = 8 if '32x32x16' in op or '32x32x8' in op else 4 if '16x16' in op else 2
            return
        if op.startswith('v_'):
            self.kind = 'valu'
            self.dpp = op.endswith('_dpp') or 'row_ror' in rest or 'row_shr' in rest or 'quad_perm' in rest or 'row_bcast' in rest
            self.perm = 'permlane' in op
            self.rl = base in ('v_readfirstlane_b32', 'v_readlane_b32')
            self.trans = base in TRANS
            self.dot = base.startswith('v_dot')
            if self.perm:
                self.defs = R[0] + R[1]; self.uses = R[0] + R[1]
            elif base.startswith('v_cmp'):
                self.defs = R[0]; self.uses = sum(R[1:], [])
            elif base in ('v_add_co_u32', 'v_sub_co_u32', 'v_addc_co_u32'):
                self.defs = R[0] + R[1]; self.uses = sum(R[2:], [])
            else:
                self.defs = R[0]; self.uses = sum(R[1:], [])
                if base in ('v_fmac_f32', 'v_dot2c_f32_bf16', 'v_writelane_b32', 'v_pk_fmac_f16') or self.dpp: self.uses = self.uses + R[0]
                if base == 'v_cndmask_b32' and len(ops) == 3: self.uses += regs('vcc')
            self.srcC = R[3] if self.dot and len(R) > 3 else []
            return
        if op.startswith('buffer_') or op.startswith('global_'):
            self.kind = 'vmem'
            allr = sum(R, [])
            self.lds = ' lds' in (' ' + rest) or '_lds_' in op
            if 'load' in op and not self.lds:
                self.defs = R[0]; self.uses = sum(R[1:], [])
            else:
                self.uses = allr
            self.wide_store = ('store' in op and ('x4' in op or 'x3' in op))
            if self.wide_store: self.sdata = R[0] if op.startswith('buffer_') else R[1]
            if self.lds: self.uses = self.uses + [('s', 'm0')]
            return
        if op.startswith('ds_'):
            self.kind = 'ds'
            if 'read' in op or 'bpermute' in op:
                self.defs = R[0]; self.uses = sum(R[1:], [])
            else:
                self.uses = sum(R, [])
            return
        if op.startswith('s_'):
            self.kind = 'salu'
            if op.startswith('s_cbranch') or op == 's_branch':
                self.target = ops[0]; self.kind = 'branch'; return
            if op.startswith('s_cmp') or op in ('s_waitcnt', 's_barrier', 's_sleep', 's_endpgm', 's_setprio', 's_bitcmp1_b32', 's_bitcmp0_b32'):
                self.uses = sum(R, []); return
            if R:
                self.defs = R[0]; self.uses = sum(R[1:], [])
            return
def need(p, c):
    n = 0
    pd = set(p.defs)
    if p.kind == 'valu':
        vd = {r for r in pd if r[0] in 'va'}; sd = {r for r in pd if r[0] == 's'}
        if c.kind == 'mfma' and vd & set(c.uses): n = max(n, 2)
        if c.kind == 'valu':
            cu = set(c.uses)
            if (c.dpp or c.perm) and vd & cu: n = max(n, 2)
            if c.rl and vd & cu: n = max(n, 1)
            if p.trans and not c.trans and vd & cu: n = max(n, 1)
            if sd & cu: n = max(n, 4 if c.base in ('v_readlane_b32', 'v_writelane_b32') else 2)
            if p.dot:
                if c.dot and c.base == p.base:
                    if vd & (cu - set(c.srcC)) or (vd & set(c.defs) and not vd & set(c.srcC)): n = max(n, 3)
                elif vd & (cu | set(c.defs)): n = max(n, 3)
        if p.dot and c.kind in ('vmem', 'ds', 'mfma') and vd & (set(c.uses) | set(c.defs)): n = max(n, 3)
        if c.kind == 'vmem' and sd & set(c.uses): n = max(n, 5)
        if c.kind == 'salu' and sd & set(c.uses): n = max(n, 1)
    if p.kind == 'mfma':
        long = {2: 5, 4: 8, 8: 12}[p.passes]
        if c.kind == 'mfma':
            if pd & (set(c.A) | set(c.B)): n = max(n, long)
            if pd & set(c.C):
                if c.C == p.defs and c.passes == p.passes: n = max(n, 2 if p.passes == 2 else 0)
                else: n = max(n, {2: 4, 4: 6, 8: 10}[p.passes])
            elif pd & set(c.defs): n = max(n, long)
        elif c.kind in ('valu', 'vmem', 'ds'):
            if pd & (set(c.uses) | set(c.defs)): n = max(n, long)
        if c.kind == 'valu' and set(p.C) & set(c.defs): n = max(n, {2: 1, 4: 3, 8: 7}[p.passes])
    if p.kind == 'vmem' and getattr(p, 'wide_store', False):
        if set(p.sdata) & set(c.defs): n = max(n, 2 if c.kind == 'valu' else 1)
    if p.kind == 'salu' and ('s', 'm0') in pd and c.kind == 'vmem' and getattr(c, 'lds', False): n = max(n, 1)
    return n
WIN = 14
def fix(lines):
    out = []; hist = []
    for ln in lines:
        i = Ins(ln)
        if i.op is None:
            out.append(i); continue
        req = 0; dist = 0
        for p in reversed([x for x in out if x.op is not None][-WIN:]):
            r = need(p, i) - dist
            req = max(req, r)
            dist += p.ws
        if req > 0:
            out.append(Ins('    s_nop %d' % (req - 1)))
        out.append(i)
    lab = {x.label: k for k, x in enumerate(out) if x.label}
    for k, x in enumerate(out):
        if x.kind == 'branch' and x.target in lab:
            before = [y for y in out[:k + 1] if y.op is not None][-WIN:]
            after = [y for y in out[lab[x.target]:] if y.op is not None][:WIN]
            seq = before + after
            for ci in range(len(before), len(seq)):
                dist = sum(y.ws for y in seq[len(before):ci])
                for pi in range(len(before) - 1, -1, -1):
                    if need(seq[pi], seq[ci]) > dist:
                        raise RuntimeError('hazard across branch: %s -> %s' % (seq[pi].text, seq[ci].text))
                    dist += seq[pi].ws
    return [x.text for x in out]
```

```python
import sys, math, struct
from asmlib import *
import hazard

def f2u(x): return struct.unpack('<I', struct.pack('<f', x))[0]

FL = 0x1000
HB = 0x2000
RG = 0x100000
QB = RG
QP = RG + 128 * 1024
CB = RG + 256 * 1024
XB = RG + 384 * 1024
MB = RG + 416 * 1024
ST = RG + 480 * 1024
CK = RG + 512 * 1024
DB = RG + 576 * 1024
DBEND = RG + 1024 * 1024
OB = 0x400000
STAMP = 0x8000000

WS, CKV, WQ, WUK, WUV, WO, WG, WU, WD, CC, WM, XX, OUT, WSD = [4 + 4 * i for i in range(14)]
def q(r): return 's[%d:%d]' % (r, r + 3)
sW, sX, sJ, sT, sSP, sLOC, sH, sQ, sA, sB, sS = 60, 61, 62, 63, 64, 65, 66, 67, 66, 67, 68
sT0, sT1, sT2 = 3, 69, 101
STB = 70

class P:
    stamps = False
    cap = 12
    first = 8
    qx = 0
    slp_h = 1; slp_q = 1; slp_qp = 2; slp_st = 3; slp_ob = 3; slp_c = 1; slp_mb = 4; slp_x = 3; slp_d = 2
    pre_x = 0
    pre_d = 0
    pre_ob = 0
    codepf = True
    force_global = False

class G(Asm):
    def __init__(self):
        super().__init__()
        self.lg = 0; self.vm = 0; self.ns = 0
    def ds(self, s, *a):
        self(s, *a); self.lg += 1; return self.lg - 1
    def vmem(self, s, *a):
        self(s, *a); self.vm += 1; return self.vm - 1
    def wait_ds(self, idx):
        self('s_waitcnt lgkmcnt(%d)', min(15, self.lg - idx - 1))
    def wait_vm(self, idx):
        self('s_waitcnt vmcnt(%d)', min(63, self.vm - idx - 1))
    def stamp(self, i):
        if P.stamps:
            self('s_memrealtime s[%d:%d]', STB + 2 * i, STB + 2 * i + 1)
            self('s_waitcnt lgkmcnt(0)')
    def execm(self, lo, hi):
        if lo == 0xffffffff and hi == 0xffffffff: self('s_mov_b64 exec, -1')
        else: self('s_mov_b32 exec_lo, 0x%x\ns_mov_b32 exec_hi, 0x%x', lo, hi)
    def poll(self, body, sleep):
        l0 = self.label('P'); l1 = self.label('Q')
        self('%s:', l0)
        body()
        self('s_cbranch_vccz %s', l1)
        self('s_add_u32 s%d, s%d, 1\ns_cmp_gt_u32 s%d, 40000\ns_cbranch_scc1 %s', sSP, sSP, sSP, l1)
        if sleep: self('s_sleep %d', sleep)
        self('s_branch %s', l0)
        self('%s:', l1)
    def allreduce(self, op, rs, tmp, steps=(1, 2, 4, 8), p16=True, p32=True):
        for st in steps:
            for r in rs: self('%s_dpp v%d, v%d, v%d row_ror:%d row_mask:0xf bank_mask:0xf', op, r, r, r, st)
        for en, ins in ((p16, 'v_permlane16_swap_b32'), (p32, 'v_permlane32_swap_b32')):
            if not en: continue
            for k, r in enumerate(rs): self('v_mov_b32 v%d, v%d', tmp + k, r)
            for k, r in enumerate(rs): self('%s v%d, v%d', ins, r, tmp + k)
            for k, r in enumerate(rs): self('%s v%d, v%d, v%d', op, r, r, tmp + k)
    def unpack8(self, dst, src):
        for i in range(4):
            self('v_lshlrev_b32 v%d, 16, v%d\nv_and_b32 v%d, 0xffff0000, v%d', dst + 2 * i, src + i, dst + 2 * i + 1, src + i)
    def silu8(self, dst4, src4, t):
        self.unpack8(t, src4)
        for i in range(8): self('v_mul_f32 v%d, 0x%x, v%d', t + 8 + i, f2u(-math.log2(math.e)), t + i)
        for i in range(8): self('v_exp_f32 v%d, v%d', t + 8 + i, t + 8 + i)
        for i in range(8): self('v_add_f32 v%d, 1.0, v%d', t + 8 + i, t + 8 + i)
        for i in range(8): self('v_rcp_f32 v%d, v%d', t + 8 + i, t + 8 + i)
        for i in range(8): self('v_mul_f32 v%d, v%d, v%d', t + i, t + i, t + 8 + i)
        for i in range(4): self('v_cvt_pk_bf16_f32 v%d, v%d, v%d', dst4 + i, t + 2 * i, t + 2 * i + 1)
    def gemv8(self, D, W, B, bstride=4):
        for ks in range(4):
            for t in range(2):
                c = '0' if ks == 0 else 'v[%d:%d]' % (D + 4 * t, D + 4 * t + 3)
                self('v_mfma_f32_16x16x32_bf16 v[%d:%d], v[%d:%d], v[%d:%d], %s', D + 4 * t, D + 4 * t + 3,
                     W + 16 * t + 4 * ks, W + 16 * t + 4 * ks + 3, B + bstride * ks, B + bstride * ks + 3, c)
    def psum(self, D):
        for st in (4, 8):
            for i in range(8): self('v_add_f32_dpp v%d, v%d, v%d row_ror:%d row_mask:0xf bank_mask:0xf', D + i, D + i, D + i, st)
    def pack8(self, dst, D):
        for i in range(4): self('v_cvt_pk_bf16_f32 v%d, v%d, v%d', dst + i, D + 2 * i, D + 2 * i + 1)
        self('v_min_u32 v%d, -2, v%d', dst + 3, dst + 3)
    def trfrags(self, dst, vbase, ks_stride, u_stride):
        for t in range(2):
            for ks in range(4):
                for u in range(2):
                    r = dst + 16 * t + 4 * ks + 2 * u
                    i = self.ds('ds_read_b64_tr_b16 v[%d:%d], v%d offset:%d', r, r + 1, vbase, ks * ks_stride + u * u_stride + 8 * t)
        return i
    def store_lg(self, data, voff, soff):
        l0 = self.label('G'); l1 = self.label('G')
        self('s_cmp_eq_u32 s%d, 0\ns_cbranch_scc1 %s', sLOC, l0)
        self('buffer_store_dwordx4 v[%d:%d], v%d, %s, s%d offen', data, data + 3, voff, q(WS), soff)
        self('s_branch %s\n%s:', l1, l0)
        self('buffer_store_dwordx4 v[%d:%d], v%d, %s, s%d offen sc1', data, data + 3, voff, q(WS), soff)
        self('%s:', l1)
        self.vm += 1

def chk_poison(g, base, n, first_idx, acc):
    for i in range(0, n, 2):
        g.wait_vm(first_idx + min(i + 1, n - 1))
        a0 = base + 4 * i + 3; a1 = base + 4 * min(i + 1, n - 1) + 3
        if i == 0: g('v_max_u32 v%d, v%d, v%d', acc, a0, a1)
        else: g('v_max3_u32 v%d, v%d, v%d, v%d', acc, acc, a0, a1)
    g('v_cmp_eq_u32 vcc, -1, v%d', acc)

def prologue(g):
    g.stamp_entry = True
    if P.stamps: g('s_memrealtime s[%d:%d]', STB, STB + 1)
    g('s_cmp_ge_u32 s2, 256\ns_cbranch_scc1 L_end')
    for r, slot in ((WS, 14), (WM, 11), (CC, 10), (XX, 0), (WQ, 2), (WUK, 3), (CKV, 1), (WUV, 4), (WO, 5), (WG, 7), (WU, 8), (WD, 9), (OUT, 12), (WSD, 14)):
        g('s_load_dwordx2 s[%d:%d], s[0:1], %d', r, r + 1, slot * 8)
    if P.codepf:
        g('s_getpc_b64 s[%d:%d]\nL_pc:', 98 if not P.stamps else 100, 99 if not P.stamps else 101)
    for r, n in ((WS, 0x10000000), (CKV, 16 << 20), (WQ, 4 << 20), (WUK, 4 << 20), (WUV, 4 << 20), (WO, 4 << 20), (WG, 1792 * 1024), (WU, 1792 * 1024),
                 (WD, 1792 * 1024), (CC, 4096), (WM, 3 << 20), (XX, 4096), (OUT, 4096), (WSD, DBEND)):
        g('s_mov_b32 s%d, 0x%x\ns_mov_b32 s%d, 0x20000', r + 2, n, r + 3)
    g('v_and_b32 v1, 63, v0\nv_lshrrev_b32 v3, 6, v0\nv_lshlrev_b32 v2, 4, v1')
    g('v_readfirstlane_b32 s%d, v3', sW)
    g('s_and_b32 s%d, s2, 7\ns_lshr_b32 s%d, s2, 3\ns_mov_b32 s%d, 0', sX, sJ, sSP)
    if P.stamps:
        for i in range(2, 30): g('s_mov_b32 s%d, 0', STB + i)
    if P.codepf:
        pc = 98 if not P.stamps else 100
        g('v_lshlrev_b32 v4, 7, v0\nv_min_u32 v4, L_end-L_pc, v4')
        g('global_load_dword v255, v4, s[%d:%d]', pc, pc + 1)
        g.vm += 1
    g('s_waitcnt lgkmcnt(0)')
    g('s_load_dword s%d, s[%d:%d], 0', sT, WS, WS + 1)
    g.stamp_ka = True
    g('s_cmp_ge_u32 s%d, 16\ns_cbranch_scc1 L_A', sJ)

def get_tag(g):
    g('s_waitcnt lgkmcnt(0)')
    g('s_mul_i32 s%d, s%d, 0x9E3779B1\ns_add_u32 s%d, s%d, 0x7F4A7C15', sT, sT, sT, sT)

def epilogue(g):
    if P.stamps:
        g('s_mov_b64 exec, -1')
        g('s_mov_b32 s98, s%d\ns_mov_b32 s99, s%d', sSP, sLOC)
        for i in range(30): g('v_writelane_b32 v3, s%d, %d', STB + i, i)
        g('s_lshl_b32 s3, s2, 4\ns_add_u32 s3, s3, s%d\ns_lshl_b32 s3, s3, 7\ns_add_u32 s3, s3, 0x%x', sW, STAMP)
        g('v_lshlrev_b32 v4, 2, v1\ns_mov_b32 exec_hi, 0')
        g('buffer_store_dword v3, v4, %s, s3 offen', q(WS))
    g('s_endpgm')

def role_F(g):
    L_WQ, L_WUK, L_WUV, L_WO, L_WM, L_X, L_W, L_Y = 0, 32768, 65536, 98304, 131072, 147456, 152064, 152832
    vT, vH, vF, vE, vEP, vTR, vUK = 3, 4, 5, 6, 7, 8, 9
    t0, t1, t2, t3 = 10, 11, 12, 13
    FA, FB, PB, D, PK = 16, 48, 80, 112, 120
    g('s_lshr_b32 s%d, s%d, 2\ns_lshl_b32 s3, s%d, 2\ns_add_u32 s%d, s%d, s3\ns_and_b32 s%d, s%d, 3', sH, sJ, sX, sH, sH, sQ, sJ)
    sTF = 68
    g('s_lshl_b32 s%d, s%d, 4\ns_add_u32 s%d, s%d, s%d', sTF, sX, sTF, sTF, sJ)
    g('v_lshrrev_b32 v%d, 4, v1\nv_and_b32 v%d, 15, v1', t0, t1)
    g('v_lshlrev_b32 v%d, 2, v%d\nv_xor_b32 v%d, v%d, v%d\nv_lshlrev_b32 v%d, 4, v%d\nv_lshl_add_u32 v%d, v%d, 13, v%d', t2, t0, t2, t2, t1, t2, t2, vT, t0, t2)
    lp = g.label('F')
    g('s_cmp_lg_u32 s%d, 3\ns_cbranch_scc1 %s', sW, lp)
    for i in range(4): g('v_mov_b32 v%d, -1', PB + i)
    g('v_lshlrev_b32 v%d, 10, v%d\nv_lshl_add_u32 v%d, v%d, 4, v%d', t2, t0, t2, t1, t2)
    g('s_lshl_b32 s3, s%d, 12\ns_lshl_b32 s%d, s%d, 8\ns_add_u32 s3, s3, s%d\ns_add_u32 s3, s3, 0x%x', sH, sT1, sQ, sT1, QB)
    g('buffer_store_dwordx4 v[%d:%d], v%d, %s, s3 offen sc1', PB, PB + 3, t2, q(WS))
    g('s_mul_i32 s3, s%d, 7168\ns_add_u32 s3, s3, 0x%x', sTF, QP)
    for i in range(7):
        if i == 4: g('s_add_u32 s3, s3, 4096')
        g('buffer_store_dwordx4 v[%d:%d], v2, %s, s3 offen offset:%d sc1', PB, PB + 3, q(WS), (i % 4) * 1024)
    g('%s:', lp)
    def dma256(srd, lbase):
        g('s_lshl_b32 s3, s%d, 2\ns_add_u32 s3, s3, s%d\ns_lshl_b32 s3, s3, 18\ns_lshl_b32 s%d, s%d, 8\ns_add_u32 s3, s3, s%d', sQ, sW, sT1, sH, sT1)
        g('s_lshl_b32 s%d, s%d, 13\ns_add_u32 s%d, s%d, %d', sT1, sW, sT1, sT1, lbase)
        for i in range(8):
            g('s_add_u32 m0, s%d, %d', sT1, i * 1024)
            k = g.vmem('buffer_load_dwordx4 v%d, %s, s3 offen nt lds', vT, q(srd))
            if i < 7: g('s_add_u32 s3, s3, 32768')
        return k
    dma256(WQ, L_WQ)
    kuk = dma256(WUK, L_WUK)
    g.stamp(1)
    g('v_bfe_u32 v%d, v1, 2, 2\nv_and_b32 v%d, 3, v1', t2, t3)
    g('v_lshlrev_b32 v%d, 4, v%d', vE, t0)
    g('v_lshl_add_u32 v%d, v%d, 6, v%d', vF, t1, vE)
    g('v_lshl_add_u32 v%d, v%d, 15, v%d', vEP, t3, vE)
    g('v_lshl_add_u32 v%d, v%d, 6, v%d', vE, t3, vE)
    g('v_lshl_add_u32 v%d, v%d, 9, v%d', vH, t2, vE)
    g('v_lshl_add_u32 v%d, v%d, 3, v%d\nv_lshlrev_b32 v%d, 8, v%d', vTR, t0, t2, vTR, vTR)
    g('v_xor_b32 v14, s%d, v%d\nv_lshl_add_u32 v%d, v14, 6, v%d\nv_lshl_add_u32 v%d, v%d, 4, v%d', sW, t2, vTR, vTR, vTR, t3, vTR)
    g('v_lshl_add_u32 v%d, v%d, 3, v%d', vUK, t2, t3)
    g('s_lshl_b32 s3, s%d, 13\ns_add_u32 s3, s3, %d', sW, L_WUK)
    g('v_lshlrev_b32 v%d, 8, v%d\nv_add_u32 v%d, s3, v%d\nv_lshl_add_u32 v%d, v%d, 6, v%d\nv_lshl_add_u32 v%d, v%d, 4, v%d', vUK, vUK, vUK, vUK, vUK, t3, vUK, vUK, t0, vUK)
    get_tag(g)
    g('s_getreg_b32 s%d, hwreg(HW_REG_XCC_ID, 0, 4)', sLOC)
    lp = g.label('F')
    g('s_cmp_lg_u32 s%d, 3\ns_cbranch_scc1 %s', sW, lp)
    g('s_waitcnt vmcnt(16)')
    g('v_mov_b32 v14, s%d\nv_mov_b32 v15, s%d\nv_mov_b32 v%d, 0', sT, sLOC, PB)
    g('s_lshl_b32 s3, s%d, 3\ns_add_u32 s3, s3, 0x%x\ns_mov_b64 exec, 1', sTF, FL)
    g('buffer_store_dwordx2 v[14:15], v%d, %s, s3 offen sc1', PB, q(WS))
    g('s_mov_b64 exec, -1')
    g('s_waitcnt vmcnt(1)\ns_branch %s_j', lp)
    g('%s:', lp)
    g('s_waitcnt vmcnt(0)')
    g('%s_j:', lp)
    g('s_barrier')
    g.stamp(2)
    sA0, sA1, sA2 = 3, sT1, sT2
    g('s_lshl_b32 s%d, s%d, 13\ns_add_u32 s%d, s%d, 0x%x\ns_add_u32 s%d, s%d, 4096', sA0, sQ, sA0, sA0, HB, sA1, sA0)
    g('s_lshl_b32 s%d, s%d, 7\ns_add_u32 s%d, s%d, 0x%x', sA2, sX, sA2, sA2, FL)
    g('v_lshlrev_b32 v%d, 3, v%d', t2, t1)
    first = [True]
    def body():
        k0 = g.vmem('buffer_load_dwordx2 v[14:15], v%d, %s, s%d offen sc1', t2, q(WS), sA2)
        for ks in range(4):
            for hf in range(2):
                r = PB + 8 * ks + 4 * hf
                g.vmem('buffer_load_dwordx4 v[%d:%d], v%d, %s, s%d offen offset:%d sc1', r, r + 3, vH, q(WS), sA0 if ks < 2 else sA1, (ks & 1) * 2048 + hf * 256)
        g.wait_vm(k0)
        g('v_xor_b32 v%d, s%d, v14', t3, sT)
        for ks in range(4):
            g.wait_vm(k0 + 2 + 2 * ks)
            g('v_bitop3_b32 v%d, v%d, v%d, s%d bitop3:0xf6', t3, t3, PB + 8 * ks + 1, sT)
            g('v_bitop3_b32 v%d, v%d, v%d, s%d bitop3:0xf6', t3, t3, PB + 8 * ks + 6, sT)
        g('v_cmp_ne_u32 vcc, 0, v%d', t3)
    g.trfrags(FA, vTR, 8192, 1024)
    for ks in range(4):
        if ks: g('v_xor_b32 v%d, %d, v%d', t0, ks << 6, vUK)
        for t in range(2):
            r = FB + 16 * t + 4 * ks
            g.ds('ds_read_b128 v[%d:%d], v%d offset:%d', r, r + 3, t0 if ks else vUK, t * 1024)
    g.poll(body, P.slp_h)
    g('s_waitcnt lgkmcnt(0)')
    g.stamp(3)
    g.gemv8(D, FA, PB + 2, 8)
    g('v_cmp_ne_u32 vcc, s%d, v15', sLOC)
    g('s_lshl_b32 s%d, s%d, 12\ns_add_u32 s%d, s%d, 0x%x', sA1, sH, sA1, sA1, QB)
    g('s_lshl_b32 s%d, s%d, 10\ns_lshl_b32 s%d, s%d, 8\ns_add_u32 s%d, s%d, s%d', sA0, sW, sA2, sQ, sA0, sA0, sA2)
    g('s_cmp_eq_u64 vcc, 0\ns_cselect_b32 s%d, %d, 0', sLOC, 0 if P.force_global else 1)
    g('s_add_u32 s%d, s%d, s%d', sA0, sA0, sA1)
    g.psum(D); g.pack8(PK, D)
    g.execm(0x000f000f, 0x000f000f)
    g.store_lg(PK, vE, sA0)
    g.execm(0xffffffff, 0xffffffff)
    g.stamp(4)
    g('s_mov_b32 s%d, 0x%x', sA2, FL)
    def body():
        kf = g.vmem('buffer_load_dwordx4 v[%d:%d], v2, %s, s%d offen sc1', PB + 16, PB + 19, q(WS), sA2)
        k0 = g.vm
        for ks in range(4):
            g.vmem('buffer_load_dwordx4 v[%d:%d], v%d, %s, s%d offen offset:%d sc1', PB + 4 * ks, PB + 4 * ks + 3, vF, q(WS), sA1, ks * 1024)
        g.wait_vm(kf)
        g('v_xor_b32 v%d, s%d, v%d', t0, sT, PB + 16)
        g('v_bitop3_b32 v%d, v%d, v%d, s%d bitop3:0xf6', t0, t0, PB + 18, sT)
        g('v_cmp_ne_u32 vcc, 0, v%d\nv_cndmask_b32 v%d, 0, -1, vcc', t0, t0)
        for i in range(0, 4, 2):
            g.wait_vm(k0 + i + 1)
            g('v_max3_u32 v%d, v%d, v%d, v%d', t0, t0, PB + 4 * i + 3, PB + 4 * i + 7)
        g('v_cmp_eq_u32 vcc, -1, v%d', t0)
    g.poll(body, P.slp_q)
    g.stamp(5)
    g.gemv8(D, FB, PB)
    g('s_lshl_b32 s%d, s%d, 8\ns_lshl_b32 s%d, s%d, 6\ns_add_u32 s%d, s%d, s%d\ns_add_u32 s%d, s%d, 0x%x', sA0, sTF, sA2, sW, sA0, sA0, sA2, sA0, sA0, QP)
    g('s_mov_b32 s%d, 0x%x', sA2, f2u(128 ** -0.5 * math.log2(math.e)))
    g.psum(D)
    for i in range(8): g('v_mul_f32 v%d, s%d, v%d', D + i, sA2, D + i)
    g.pack8(PK, D)
    g.execm(0x000f000f, 0x000f000f)
    g.vmem('buffer_store_dwordx4 v[%d:%d], v%d, %s, s%d offen sc1', PK, PK + 3, vEP, q(WS), sA0)
    g.execm(0xffffffff, 0xffffffff)
    g.stamp(6)
    MF, SF, ST_ = 128, 160, 176
    g('v_and_b32 v%d, 3, v1\nv_lshrrev_b32 v%d, 4, v1\nv_lshlrev_b32 v%d, 4, v%d\nv_lshl_add_u32 v%d, v%d, 10, v%d', t3, t0, t2, t0, t2, t3, t2)
    g('s_lshl_b32 s3, s%d, 8', sQ)
    kc = g.vm
    for ks in range(4): g.vmem('buffer_load_dwordx4 v[%d:%d], v%d, %s, s3 offen offset:%d', PB + 4 * ks, PB + 4 * ks + 3, t2, q(CC), ks * 64)
    dma256(WUV, L_WUV)
    g('v_lshrrev_b32 v%d, 3, v1\nv_mul_u32_u24 v%d, 6144, v%d\nv_and_b32 v%d, 7, v1\nv_lshl_add_u32 v%d, v%d, 4, v%d', t0, t0, t0, t1, t0, t1, t0)
    g('s_lshl_b32 s3, s%d, 2\ns_add_u32 s3, s3, s%d\ns_mul_i32 s3, s3, %d\ns_lshl_b32 s%d, s%d, 7\ns_add_u32 s3, s3, s%d\ns_add_u32 s3, s3, 2048', sQ, sW, 32 * 6144, sT1, sH, sT1)
    g('s_lshl_b32 s%d, s%d, 12\ns_add_u32 s%d, s%d, %d', sT1, sW, sT1, sT1, L_WM)
    for i in range(4):
        g('s_add_u32 m0, s%d, %d', sT1, i * 1024)
        km = g.vmem('buffer_load_dwordx4 v%d, %s, s3 offen nt lds', t0, q(WM))
        if i < 3: g('s_add_u32 s3, s3, %d', 8 * 6144)
    g('v_lshrrev_b32 v%d, 2, v1\nv_lshlrev_b32 v%d, 10, v%d\nv_lshl_add_u32 v%d, v%d, 4, v%d', t1, t1, t1, t1, t3, t1)
    g('s_lshl_b32 s3, s%d, 2\ns_add_u32 s3, s3, s%d\ns_lshl_b32 s3, s3, 17\ns_lshl_b32 s%d, s%d, 6\ns_add_u32 s3, s3, s%d', sX, sW, sT1, sJ, sT1)
    g('s_lshl_b32 s%d, s%d, 13\ns_add_u32 s%d, s%d, %d', sT1, sW, sT1, sT1, L_WO)
    for i in range(8):
        g('s_add_u32 m0, s%d, %d', sT1, i * 1024)
        ko = g.vmem('buffer_load_dwordx4 v%d, %s, s3 offen nt lds', t1, q(WO))
        if i < 7: g('s_add_u32 s3, s3, 16384')
    g.wait_vm(kc + 3)
    for ks in range(4): g.silu8(SF + 4 * ks, PB + 4 * ks, ST_)
    g.wait_vm(km)
    g('s_barrier')
    g('v_add_u32 v%d, %d, v%d', t0, L_WUV, vTR)
    g.trfrags(FA, t0, 8192, 1024)
    lp = g.label('F')
    g('s_cmp_gt_u32 s%d, 1\ns_cbranch_scc1 %s', sW, lp)
    g('v_lshrrev_b32 v%d, 4, v1\nv_bfe_u32 v%d, v1, 2, 2\nv_lshl_add_u32 v%d, v%d, 3, v%d\nv_lshlrev_b32 v%d, 7, v%d\nv_lshl_add_u32 v%d, v%d, 4, v%d', t0, t2, t0, t0, t2, t0, t0, t0, t3, t0)
    g('s_lshl_b32 s3, s%d, 6\ns_add_u32 s3, s3, %d\nv_add_u32 v%d, s3, v%d', sW, L_WM, t0, t0)
    g.trfrags(MF, t0, 4096, 512)
    g('s_waitcnt lgkmcnt(0)')
    g.gemv8(D, MF, SF)
    g('s_lshl_b32 s3, s%d, 14\ns_lshl_b32 s%d, s%d, 7\ns_add_u32 s3, s3, s%d\ns_lshl_b32 s%d, s%d, 6\ns_add_u32 s3, s3, s%d\ns_add_u32 s3, s3, 0x%x', sQ, sT1, sH, sT1, sT1, sW, sT1, MB)
    g('v_lshrrev_b32 v%d, 4, v1\nv_lshlrev_b32 v%d, 4, v%d\nv_lshl_add_u32 v%d, v%d, 12, v%d', t0, t0, t0, t0, t3, t0)
    g.pack8(PK, D)
    g.execm(0x000f000f, 0x000f000f)
    g('buffer_store_dwordx4 v[%d:%d], v%d, %s, s3 offen sc1', PK, PK + 3, t0, q(WS))
    g.execm(0xffffffff, 0xffffffff)
    g('%s:', lp)
    g('s_waitcnt vmcnt(0)')
    g('v_lshrrev_b32 v%d, 4, v1\nv_bfe_u32 v%d, v1, 2, 2\nv_lshl_add_u32 v%d, v%d, 3, v%d\nv_lshlrev_b32 v%d, 6, v%d\nv_lshl_add_u32 v%d, v%d, 4, v%d', t0, t2, t0, t0, t2, t0, t0, t0, t3, t0)
    g('s_lshl_b32 s3, s%d, 13\ns_add_u32 s3, s3, %d\nv_add_u32 v%d, s3, v%d', sW, L_WO, t0, t0)
    g.trfrags(FB, t0, 2048, 256)
    g.stamp(7)
    WL, AC, vCK, vSM, vIL = 128, 144, 152, 153, 154
    lp = g.label('F')
    g('s_cmp_lg_u32 s%d, 0\ns_cbranch_scc1 %s', sW, lp)
    g('v_lshlrev_b32 v%d, 8, v1', t0)
    g('s_lshl_b32 s3, s%d, 3\ns_add_u32 s3, s3, 0x%x\ns_add_u32 s%d, s3, 16384', sH, ST, sT1)
    def body():
        g('buffer_load_dwordx2 v[%d:%d], v%d, %s, s3 offen sc1', PB, PB + 1, t0, q(WS))
        g('buffer_load_dwordx2 v[%d:%d], v%d, %s, s%d offen sc1', PB + 2, PB + 3, t0, q(WS), sT1)
        g('s_waitcnt vmcnt(0)')
        g('v_max_u32 v%d, v%d, v%d\nv_cmp_eq_u32 vcc, -1, v%d', t1, PB + 1, PB + 3, t1)
    g.poll(body, P.slp_st)
    g('v_mov_b32 v%d, v%d\nv_mov_b32 v%d, v%d', PB + 4, PB, PB + 5, PB + 2)
    g.allreduce('v_max_f32', [PB + 4, PB + 5], PB + 6, p32=False)
    g('v_sub_f32 v%d, v%d, v%d\nv_sub_f32 v%d, v%d, v%d', PB, PB, PB + 4, PB + 2, PB + 2, PB + 5)
    g('v_exp_f32 v%d, v%d\nv_exp_f32 v%d, v%d', PB, PB, PB + 2, PB + 2)
    g('v_cvt_pk_bf16_f32 v%d, v%d, 0\nv_cvt_pk_bf16_f32 v%d, v%d, 0', PB, PB, PB + 2, PB + 2)
    g('v_lshlrev_b32 v%d, 2, v1\nv_add_u32 v%d, %d, v%d', t1, t1, L_W, t1)
    g('ds_write_b32 v%d, v%d\nds_write_b32 v%d, v%d offset:256', t1, PB, t1, PB + 2)
    g('v_lshlrev_b32 v%d, 16, v%d\nv_lshlrev_b32 v%d, 16, v%d', PB + 4, PB, PB + 5, PB + 2)
    g('v_mul_f32 v%d, v%d, v%d\nv_mul_f32 v%d, v%d, v%d', PB + 4, PB + 4, PB + 1, PB + 5, PB + 5, PB + 3)
    g.allreduce('v_add_f32', [PB + 4, PB + 5], PB + 6, p32=False)
    g('v_rcp_f32 v%d, v%d\nv_rcp_f32 v%d, v%d', PB + 4, PB + 4, PB + 5, PB + 5)
    g('v_lshrrev_b32 v%d, 5, v1\nv_lshlrev_b32 v%d, 2, v%d\nv_add_u32 v%d, %d, v%d', t1, t1, t1, t1, L_W + 512, t1)
    g('ds_write_b32 v%d, v%d\nds_write_b32 v%d, v%d offset:8', t1, PB + 4, t1, PB + 5)
    g('%s:', lp)
    g('s_waitcnt lgkmcnt(0)\ns_barrier')
    g.stamp(8)
    if P.pre_ob: g('s_sleep %d', P.pre_ob)
    g('s_lshl_b32 s%d, s%d, 15\ns_lshl_b32 s%d, s%d, 13\ns_add_u32 s%d, s%d, s%d\ns_add_u32 s%d, s%d, 0x%x\ns_add_u32 s%d, s%d, 4096', sA0, sTF, sA1, sW, sA0, sA0, sA1, sA0, sA0, OB, sA1, sA0)
    g('s_lshl_b32 s%d, s%d, 12', sA2, sW)
    g('s_lshl_b32 vcc_lo, s%d, 7\ns_add_u32 s%d, s%d, vcc_lo\ns_lshl_b32 vcc_lo, s%d, 2\ns_add_u32 s%d, s%d, vcc_lo\ns_add_u32 s%d, s%d, 0x%x', sQ, sA2, sA2, sH, sA2, sA2, sA2, sA2, CK)
    g('v_lshrrev_b32 v%d, 4, v1\nv_and_b32 v%d, 7, v1\nv_lshl_add_u32 v%d, v%d, 5, v%d\nv_lshlrev_b32 v%d, 9, v%d', t0, t1, t1, t0, t1, t1, t1)
    g('v_mov_b32 v%d, 0', vCK)
    g('s_lshl_b32 vcc_lo, s%d, 5\ns_add_u32 vcc_lo, vcc_lo, %d', sW, L_W)
    g('v_lshlrev_b32 v%d, 7, v%d\nv_add_u32 v%d, vcc_lo, v%d', t2, t0, t2, t2)
    g('v_lshlrev_b32 v%d, 2, v%d\nv_add_u32 v%d, %d, v%d', t3, t0, t3, L_W + 512, t3)
    started = [False]
    def body():
        k0 = g.vm
        for i in range(8):
            g.vmem('buffer_load_dwordx4 v[%d:%d], v2, %s, s%d offen offset:%d sc1', PB + 4 * i, PB + 4 * i + 3, q(WS), sA0 if i < 4 else sA1, (i & 3) * 1024)
        g.execm(0x00ff00ff, 0x00ff00ff)
        kk = g.vmem('buffer_load_dword v%d, v%d, %s, s%d offen sc1', vCK, t1, q(WS), sA2)
        g.execm(0xffffffff, 0xffffffff)
        g('ds_read_b128 v[%d:%d], v%d\nds_read_b128 v[%d:%d], v%d offset:16\nds_read_b32 v%d, v%d', WL, WL + 3, t2, WL + 4, WL + 7, t2, vIL, t3)
        g('s_waitcnt lgkmcnt(0)')
        for i in range(8): g('v_lshlrev_b32 v%d, 16, v%d', WL + 8 + i, WL + i)
        for i in range(8):
            g.wait_vm(k0 + i)
            r = PB + 4 * i
            for d in range(4):
                c0 = '0' if i == 0 else 'v%d' % (AC + 2 * d); c1 = '0' if i == 0 else 'v%d' % (AC + 2 * d + 1)
                if i == 0:
                    g('v_dot2_f32_bf16 v%d, v%d, v%d, 0', AC + 2 * d, r + d, WL + i)
                    g('v_dot2_f32_bf16 v%d, v%d, v%d, 0', AC + 2 * d + 1, r + d, WL + 8 + i)
                else:
                    g('v_dot2c_f32_bf16 v%d, v%d, v%d', AC + 2 * d, r + d, WL + i)
                    g('v_dot2c_f32_bf16 v%d, v%d, v%d', AC + 2 * d + 1, r + d, WL + 8 + i)
            if i == 0: g('v_add3_u32 v%d, v%d, v%d, v%d\nv_add_u32 v%d, v%d, v%d', vSM, r, r + 1, r + 2, vSM, vSM, r + 3)
            else: g('v_add3_u32 v%d, v%d, v%d, v%d\nv_add3_u32 v%d, v%d, v%d, v%d', vSM, vSM, r, r + 1, vSM, vSM, r + 2, r + 3)
        g.wait_vm(kk)
        g('v_sub_u32 v%d, v%d, v%d', vSM, vSM, vCK)
        for k, st in enumerate((1, 2, 4, 8)):
            g('v_mul_f32 v%d, v%d, v%d\nv_mul_f32 v%d, v%d, v%d', AC + 2 * k, AC + 2 * k, vIL, AC + 2 * k + 1, AC + 2 * k + 1, vIL)
            g('v_add_u32_dpp v%d, v%d, v%d row_ror:%d row_mask:0xf bank_mask:0xf', vSM, vSM, vSM, st)
        for i in range(4): g('v_cvt_pk_bf16_f32 v%d, v%d, v%d', PK + i, AC + 2 * i, AC + 2 * i + 1)
        g('v_and_b32 v%d, 0x7fffffff, v%d\nv_and_b32 v%d, 0x80000000, v%d\nv_or_b32 v%d, v%d, v%d', vSM, vSM, vIL, vCK, vSM, vSM, vIL)
        g('v_cmp_ne_u32 vcc, 0, v%d', vSM)
    g('s_mul_i32 vcc_lo, s%d, %d\ns_add_u32 vcc_lo, vcc_lo, %d', sW, 4 * 272, L_X)
    g('v_mul_u32_u24 v14, 272, v%d\nv_and_b32 v15, 15, v1\nv_lshl_add_u32 v14, v15, 4, v14\nv_add_u32 v14, vcc_lo, v14', t0)
    g('v_mul_u32_u24 v15, 272, v15\nv_lshl_add_u32 v15, v%d, 4, v15\nv_add_u32 v15, %d, v15', t0, L_X)
    g.poll(body, P.slp_ob)
    g.stamp(9)
    g('ds_write_b128 v14, v[%d:%d]', PK, PK + 3)
    g('s_lshl_b32 s%d, s%d, 12\ns_lshl_b32 s%d, s%d, 10\ns_add_u32 s%d, s%d, s%d\ns_lshl_b32 s%d, s%d, 8\ns_add_u32 s%d, s%d, s%d\ns_add_u32 s%d, s%d, 0x%x',
      sA0, sH, sA1, sW, sA0, sA0, sA1, sA1, sQ, sA0, sA0, sA1, sA0, sA0, CB)
    g('s_waitcnt lgkmcnt(0)\ns_barrier')
    for ks in range(4): g('ds_read_b128 v[%d:%d], v15 offset:%d', PB + 4 * ks, PB + 4 * ks + 3, ks * 64)
    g('s_lshl_b32 s%d, s%d, 2\ns_add_u32 s%d, s%d, s%d\ns_lshl_b32 s%d, s%d, 12\ns_add_u32 s%d, s%d, 0x%x', sA1, sX, sA1, sA1, sW, sA1, sA1, sA1, sA1, CB)
    g('s_waitcnt lgkmcnt(0)')
    g.gemv8(D, FA, PB)
    g.psum(D); g.pack8(PK, D)
    g.execm(0x000f000f, 0x000f000f)
    g.store_lg(PK, vE, sA0)
    g.execm(0xffffffff, 0xffffffff)
    g.stamp(10)
    def body():
        k0 = g.vm
        for ks in range(4):
            g.vmem('buffer_load_dwordx4 v[%d:%d], v%d, %s, s%d offen offset:%d sc1', PB + 4 * ks, PB + 4 * ks + 3, vF, q(WS), sA1, ks * 1024)
        chk_poison(g, PB, 4, k0, t0)
    g('v_and_b32 v%d, 3, v1\nv_lshrrev_b32 v%d, 4, v1\nv_lshl_add_u32 v%d, v%d, 2, v%d\nv_lshlrev_b32 v%d, 5, v%d\nv_add_u32 v%d, %d, v%d', t3, t1, t1, t3, t1, t1, t1, t1, L_Y, t1)
    g('s_lshl_b32 vcc_lo, s%d, 9\nv_add_u32 v%d, vcc_lo, v%d', sW, t2, t1)
    g('s_lshl_b32 s%d, s%d, 12\ns_lshl_b32 s%d, s%d, 6\ns_add_u32 s%d, s%d, s%d\ns_add_u32 s%d, s%d, 0x%x', sA0, sX, sA2, sJ, sA0, sA0, sA2, sA0, sA0, XB)
    g('v_lshrrev_b32 v14, 4, v1\nv_lshlrev_b32 v14, 4, v14\nv_lshl_add_u32 v14, v%d, 10, v14', t3)
    g.poll(body, P.slp_c)
    g.stamp(11)
    g.gemv8(D, FB, PB)
    g.psum(D)
    g.execm(0x000f000f, 0x000f000f)
    g('ds_write_b128 v%d, v[%d:%d]\nds_write_b128 v%d, v[%d:%d] offset:16', t2, D, D + 3, t2, D + 4, D + 7)
    g('s_waitcnt lgkmcnt(0)\ns_barrier')
    lp = g.label('F')
    g('s_cmp_lg_u32 s%d, 0\ns_cbranch_scc1 %s', sW, lp)
    for w in range(1, 4):
        g('ds_read_b128 v[%d:%d], v%d offset:%d\nds_read_b128 v[%d:%d], v%d offset:%d', PB + 8 * w, PB + 8 * w + 3, t1, w * 512, PB + 8 * w + 4, PB + 8 * w + 7, t1, w * 512 + 16)
    for w in range(1, 4):
        g('s_waitcnt lgkmcnt(%d)', 6 - 2 * w)
        for i in range(0, 8, 2): g('v_pk_add_f32 v[%d:%d], v[%d:%d], v[%d:%d]', D + i, D + i + 1, D + i, D + i + 1, PB + 8 * w + i, PB + 8 * w + i + 1)
    g.pack8(PK, D)
    g('buffer_store_dwordx4 v[%d:%d], v14, %s, s%d offen sc1', PK, PK + 3, q(WS), sA0)
    g('%s:', lp)
    g.stamp(12)
    epilogue(g)

def role_A(g):
    t0, t1, t2, t3, t4, t5 = 10, 11, 12, 13, 14, 15
    LC = 32768
    g('L_A:')
    g.vm = 1 if P.codepf else 0
    sJA = sJ
    g('s_sub_u32 s%d, s%d, 16', sJ, sJ)
    g('s_lshl_b32 s%d, s%d, 4\ns_add_u32 s%d, s%d, s%d', sA, sX, sA, sA, sJ)
    g('s_mov_b32 s%d, 0', sLOC)
    sKO, sKM = sB, sS
    g('s_lshl_b32 s%d, s%d, 17\ns_lshl_b32 s%d, s%d, 15\ns_add_u32 s%d, s%d, s%d\ns_add_u32 s%d, s%d, %d', sKO, sA, sKM, sW, sKO, sKO, sKM, sKM, sKM, LC)
    def ckv(i):
        f = ((i & 3) << 2) | ((i >> 2) & 3)
        g('s_add_u32 m0, s%d, %d', sKM, i * 1024)
        if f: g('v_xor_b32 v3, %d, v2', f << 4)
        k = g.vmem('buffer_load_dwordx4 v%d, %s, s%d offen nt lds', 3 if f else 2, q(CKV), sKO)
        g('s_add_u32 s%d, s%d, 1024', sKO, sKO)
        return k
    lno = g.label('A'); ljoin = g.label('A')
    g('s_cmp_ge_u32 s%d, 4\ns_cbranch_scc1 %s', sX, lno)
    vm_save = g.vm
    g('v_lshrrev_b32 v%d, 2, v1\nv_and_b32 v%d, 3, v1\nv_mul_u32_u24 v%d, 6144, v%d\nv_lshl_add_u32 v%d, v%d, 4, v%d', t0, t3, t0, t0, t0, t3, t0)
    g('s_lshl_b32 s3, s%d, 2\ns_add_u32 s3, s3, s%d\ns_mul_i32 s3, s3, %d\ns_lshl_b32 s%d, s%d, 6\ns_add_u32 s3, s3, s%d', sX, sW, 32 * 6144, sT1, sJ, sT1)
    sTB = sT2
    g('s_cmp_eq_u32 s%d, 3\ns_cselect_b32 s%d, 2, 1\ns_add_u32 s%d, s%d, s%d\ns_lshl_b32 s%d, s%d, 12', sW, sT1, sTB, sW, sT1, sTB, sTB)
    for i in range(2):
        for mu in range(2):
            g('s_add_u32 m0, s%d, %d', sTB, mu * 2048 + i * 1024 - mu * 1024)
            kw = g.vmem('buffer_load_dwordx4 v%d, %s, s3 offen offset:%d nt lds', t0, q(WM), mu * 1024)
        if i == 0: g('s_add_u32 s3, s3, %d', 16 * 6144)
    g('v_lshrrev_b32 v%d, 4, v1\nv_lshlrev_b32 v%d, 4, v%d\nv_lshl_add_u32 v%d, v%d, 10, v%d', t1, t2, t1, t2, t3, t2)
    g('s_lshl_b32 s3, s%d, 8\ns_lshl_b32 s%d, s%d, 6\ns_add_u32 s3, s3, s%d', sX, sT1, sW, sT1)
    kc = g.vmem('buffer_load_dwordx4 v[32:35], v%d, %s, s3 offen', t2, q(CC))
    g('s_lshl_b32 s3, s%d, 10', sW)
    kx = g.vmem('buffer_load_dwordx4 v[36:39], v2, %s, s3 offen', q(XX))
    g('v_bfe_u32 v%d, v1, 2, 2\nv_bfe_u32 v%d, v1, 4, 1', t4, t5)
    g('v_lshlrev_b32 v%d, 10, v%d\nv_lshl_add_u32 v%d, v%d, 4, v%d\nv_lshl_add_u32 v%d, v%d, 3, v%d', t2, t4, t2, t3, t2, t2, t5, t2)
    g('s_lshl_b32 s3, s%d, 6', sJ)
    kx2 = g.vmem('buffer_load_dwordx2 v[40:41], v%d, %s, s3 offen', t2, q(XX))
    for i in range(P.first): ckv(i)
    g.stamp(1)
    g.wait_vm(kc)
    g.silu8(44, 32, 48)
    g.wait_vm(kx)
    g.unpack8(48, 36)
    g('v_mul_f32 v56, v48, v48\nv_add_f32 v57, v48, v49\nv_fmac_f32 v56, v49, v49')
    for i in range(2, 8): g('v_add_f32 v57, v57, v%d\nv_fmac_f32 v56, v%d, v%d', 48 + i, 48 + i, 48 + i)
    g.allreduce('v_add_f32', [56, 57], 58)
    g('v_mul_f32 v60, 0x%x, v57\nv_mul_f32 v56, 0x%x, v56\nv_fma_f32 v56, -v60, v60, v56\nv_max_f32 v56, 0, v56\nv_add_f32 v56, 0x%x, v56\nv_rsq_f32 v61, v56', f2u(1 / 512), f2u(1 / 512), f2u(1e-5))
    g('s_lshl_b32 s3, s%d, 3\nv_mov_b32 v58, s3', sW)
    g('v_lshl_add_u32 v%d, v%d, 3, v%d\nv_lshlrev_b32 v%d, 6, v%d\nv_lshl_add_u32 v%d, v%d, 4, v%d\nv_add_u32 v%d, s%d, v%d', t0, t1, t4, t0, t0, t0, t3, t0, t0, sTB, t0)
    g('s_mov_b64 exec, 1\nds_write_b64 v58, v[60:61]\ns_mov_b64 exec, -1')
    g.wait_vm(kw)
    for mu in range(2):
        for t in range(2):
            for u in range(2):
                r = 64 + 8 * mu + 4 * t + 2 * u
                g('ds_read_b64_tr_b16 v[%d:%d], v%d offset:%d', r, r + 1, t0, mu * 2048 + u * 256 + 8 * t)
    g('v_lshl_add_u32 v%d, v%d, 2, v%d\nv_lshlrev_b32 v%d, 5, v%d\ns_lshl_b32 s3, s%d, 10\ns_add_u32 s3, s3, 16384\nv_add_u32 v%d, s3, v%d', t2, t3, t1, t2, t2, sW, t2, t2)
    g('s_waitcnt lgkmcnt(0)')
    for k in range(4): g('v_mfma_f32_16x16x32_bf16 v[%d:%d], v[%d:%d], v[44:47], 0', 80 + 4 * k, 83 + 4 * k, 64 + 4 * k, 67 + 4 * k)
    g('v_lshl_add_u32 v%d, v%d, 2, v%d\nv_lshlrev_b32 v%d, 5, v%d\nv_lshl_add_u32 v%d, v%d, 4, v%d\nv_add_u32 v%d, 16384, v%d', t0, t4, t3, t0, t0, t0, t5, t0, t0, t0)
    g('v_lshlrev_b32 v%d, 3, v%d', t4, t4)
    g.execm(0x000f000f, 0x000f000f)
    for k in range(4): g('ds_write_b128 v%d, v[%d:%d] offset:%d', t2, 80 + 4 * k, 83 + 4 * k, (k >> 1) * 512 + (k & 1) * 16)
    g.execm(0xffffffff, 0xffffffff)
    get_tag(g)
    g('s_barrier')
    lp = g.label('A')
    g('s_cmp_lg_u32 s%d, 0\ns_cbranch_scc1 %s', sW, lp)
    g('ds_read_b64 v[60:61], v%d', t4)
    for w in range(4):
        for mu in range(2): g('ds_read_b128 v[%d:%d], v%d offset:%d', 64 + 8 * w + 4 * mu, 67 + 8 * w + 4 * mu, t0, w * 1024 + mu * 512)
    g.wait_vm(kx2)
    g('v_lshlrev_b32 v48, 16, v40\nv_and_b32 v49, 0xffff0000, v40\nv_lshlrev_b32 v50, 16, v41\nv_and_b32 v51, 0xffff0000, v41')
    g('s_cmp_eq_u32 s%d, 0\ns_cselect_b32 s3, 1.0, 0', sX)
    g('s_waitcnt lgkmcnt(6)')
    for i in range(4): g('v_sub_f32 v%d, v%d, v60', 48 + i, 48 + i)
    for i in range(4): g('v_mul_f32 v%d, v%d, v61', 48 + i, 48 + i)
    for i in range(4): g('v_add_f32 v%d, s3, v%d', 68 + i, 68 + i)
    for w in range(1, 4):
        g('s_waitcnt lgkmcnt(%d)', 6 - 2 * w)
        for i in range(0, 8, 2): g('v_pk_add_f32 v[%d:%d], v[%d:%d], v[%d:%d]', 64 + i, 65 + i, 64 + i, 65 + i, 64 + 8 * w + i, 65 + 8 * w + i)
    for i in range(4): g('v_fmac_f32 v%d, v%d, v%d', 64 + i, 48 + i, 68 + i)
    g('v_cmp_eq_u32 vcc, 0, v%d\nv_mov_b32 v58, s%d', t5, sT)
    g('v_cvt_pk_bf16_f32 v52, v64, v65\nv_cvt_pk_bf16_f32 v55, v66, v67')
    g('v_cndmask_b32 v53, v55, v58, vcc\nv_cndmask_b32 v54, v58, v52, vcc')
    g('s_lshl_b32 s3, s%d, 11\ns_lshl_b32 s%d, s%d, 9\ns_add_u32 s3, s3, s%d\ns_add_u32 s3, s3, 0x%x\ns_mov_b32 exec_hi, 0', sJ, sT1, sX, sT1, HB)
    g('buffer_store_dwordx4 v[52:55], v2, %s, s3 offen sc1', q(WS))
    g('s_mov_b64 exec, -1')
    g('%s:', lp)
    g.stamp(2)
    g('s_branch %s', ljoin)
    g('%s:', lno)
    for i in range(P.first): ckv(i)
    get_tag(g)
    g('%s:', ljoin)
    VA, VB, RA, RB_, SA, PP = 16, 24, 32, 64, 96, 112
    kfl = None
    for i in range(P.first, 32):
        g('s_waitcnt vmcnt(%d)', P.cap - 1)
        ckv(i)
        if i == 12:
            g('v_and_b32 v%d, 31, v1\nv_lshrrev_b32 v%d, 5, v1', t0, t1)
            g('v_and_b32 v%d, 3, v1\nv_bfe_u32 v%d, v1, 2, 2\nv_lshl_or_b32 v%d, v%d, 2, v%d\nv_xor_b32 v%d, v%d, v%d', t2, t3, t2, t2, t3, t2, t2, t1)
            g('v_lshlrev_b32 v%d, 4, v%d', t2, t2)
            g('v_lshl_add_u32 v%d, v%d, 10, v%d\nv_add_u32 v%d, s%d, v%d\nv_lshl_add_u32 v%d, v%d, 9, v%d', VA, t0, t2, VA, sKM, VA, VB, t0, t2)
            for t in range(1, 8): g('v_xor_b32 v%d, %d, v%d\nv_xor_b32 v%d, %d, v%d', VA + t, t << 5, VA, VB + t, t << 5, VB)
        if i == 24:
            g('s_mov_b32 s3, 0x%x', FL)
            kfl = g.vmem('buffer_load_dwordx4 v[4:7], v2, %s, s3 offen sc1', q(WS))
    g.stamp(3)
    g.wait_vm(kfl)
    g('v_xor_b32 v%d, s%d, v4\nv_bitop3_b32 v%d, v%d, v6, s%d bitop3:0xf6\nv_cmp_ne_u32 vcc, 0, v%d', t2, sT, t2, t2, sT, t2)
    lok = g.label('A')
    g('s_cbranch_vccz %s', lok)
    def body():
        g('buffer_load_dwordx4 v[4:7], v2, %s, s3 offen sc1\ns_waitcnt vmcnt(0)', q(WS))
        g('v_xor_b32 v%d, s%d, v4\nv_bitop3_b32 v%d, v%d, v6, s%d bitop3:0xf6\nv_cmp_ne_u32 vcc, 0, v%d', t2, sT, t2, t2, sT, t2)
    g.poll(body, 2)
    g('%s:', lok)
    g('s_and_b32 s3, s%d, 1\ns_lshl_b32 s3, s3, 1\nv_xor_b32 v%d, s3, v%d\nv_lshlrev_b32 v%d, 4, v%d\nv_lshl_add_u32 v%d, v%d, 14, v%d', sW, t2, t0, t2, t2, t2, t1, t2)
    g('s_lshl_b32 s3, s%d, 12\nv_add_u32 v%d, s3, v%d', sW, t2, t2)
    g('s_lshr_b32 s3, s%d, 5\ns_lshl_b32 s3, s3, 15\ns_lshl_b32 s%d, s%d, 13\ns_add_u32 s3, s3, s%d\ns_add_u32 s3, s3, 0x%x\ns_add_u32 s%d, s3, 4096', sA, sT1, sW, sT1, QP, sT1)
    g('s_waitcnt vmcnt(%d)', P.qx)
    g.stamp(4)
    def body():
        k0 = g.vm
        for i in range(8):
            g.vmem('buffer_load_dwordx4 v[%d:%d], v2, %s, s%d offen offset:%d sc1', RA + 4 * i, RA + 4 * i + 3, q(WS), 3 if i < 4 else sT1, (i & 3) * 1024)
        chk_poison(g, RA, 8, k0, t3)
    g.poll(body, P.slp_qp)
    g.stamp(5)
    for i in range(8):
        c = (((i & 3) << 2) | (i >> 2)) << 4
        if c: g('v_xor_b32 v%d, %d, v%d', t3 + (i & 1), c, t2)
        g('ds_write_b128 v%d, v[%d:%d] offset:%d', (t3 + (i & 1)) if c else t2, RA + 4 * i, RA + 4 * i + 3, i * 512)
    g('s_waitcnt lgkmcnt(0)\ns_barrier')
    PR, PKO, RBK, OA = 208, 192, 240, 128
    vP, vS, vR, vO, vX = 4, 8, 9, 3, 120
    g.lg = 0
    idx = {}
    def rd(ks):
        s = ks % 8; t = ks & 7
        g.ds('ds_read_b128 v[%d:%d], v%d offset:%d', RA + 4 * s, RA + 4 * s + 3, VA + t, (ks >> 3) * 256)
        idx[ks] = g.ds('ds_read_b128 v[%d:%d], v%d offset:%d', RB_ + 4 * s, RB_ + 4 * s + 3, VB + t, (ks >> 4) * 16384 + ((ks >> 3) & 1) * 256)
    for ks in range(7): rd(ks)
    fill = []
    fill += ['v_bfe_u32 v%d, v1, 2, 2' % t3, 'v_and_b32 v%d, 1, v1' % t4, 'v_bfe_u32 v%d, v1, 4, 1' % t5,
             'v_lshl_or_b32 v%d, v%d, 1, v%d' % (t4, t4, t5), 'v_xor_b32 v%d, v%d, v%d' % (t4, t4, t1),
             'v_lshl_or_b32 v%d, v%d, 2, v%d' % (t4, t3, t4), 'v_lshlrev_b32 v%d, 4, v%d' % (t4, t4),
             'v_lshl_add_u32 v%d, v%d, 2, v%d' % (t3, t1, t3), 'v_lshl_add_u32 v%d, v%d, 10, v%d' % (t4, t3, t4),
             'v_bfe_u32 v%d, v1, 1, 1' % t5, 'v_lshl_add_u32 v%d, v%d, 3, v%d' % (t4, t5, t4),
             's_lshl_b32 s3, s%d, 8' % sW, 's_add_u32 s3, s3, %d' % LC, 'v_add_u32 v%d, s3, v%d' % (vX, t4),
             'v_mov_b32 v%d, v%d' % (vP, vX), 'v_xor_b32 v%d, 32, v%d' % (vP + 1, vX), 'v_add_u32 v%d, 8192, v%d' % (vP + 1, vP + 1),
             'v_add_u32 v%d, 0x10000, v%d' % (vP + 2, vP), 'v_add_u32 v%d, 0x10000, v%d' % (vP + 3, vP + 1),
             'v_lshlrev_b32 v%d, 4, v%d' % (t3, t0), 's_lshl_b32 s3, s%d, 2' % sW, 'v_add_u32 v%d, s3, v%d' % (t4, t3),
             'v_and_b32 v%d, 7, v%d' % (t5, t0), 'v_lshlrev_b32 v%d, 1, v%d' % (vS, t1), 'v_xor_b32 v%d, v%d, v%d' % (vS, vS, t5),
             'v_lshlrev_b32 v%d, 4, v%d' % (vS, vS), 'v_lshl_add_u32 v%d, v%d, 7, v%d' % (vS, t0, vS),
             's_lshl_b32 s3, s%d, 12' % sW, 's_add_u32 s3, s3, 16384', 'v_add_u32 v%d, s3, v%d' % (vS, vS),
             'v_lshrrev_b32 v%d, 3, v1' % t5, 'v_and_b32 v%d, 7, v1' % vO, 'v_xor_b32 v%d, v%d, v%d' % (vR, vO, t5),
             'v_lshlrev_b32 v%d, 4, v%d' % (vR, vR), 'v_lshl_add_u32 v%d, v%d, 7, v%d' % (vR, t5, vR), 'v_add_u32 v%d, s3, v%d' % (vR, vR),
             'v_lshlrev_b32 v%d, 4, v%d' % (vO, vO), 'v_lshl_add_u32 v%d, v%d, 17, v%d' % (vO, t5, vO),
             's_lshl_b32 s3, s%d, 11' % sW, 'v_add_u32 v%d, s3, v2' % t5,
             's_and_b32 s%d, s%d, 31' % (sKO, sA), 's_lshl_b32 s%d, s%d, 10' % (sKO, sKO), 's_lshr_b32 s3, s%d, 5' % sA, 's_lshl_b32 s3, s3, 8',
             's_add_u32 s%d, s%d, s3' % (sKO, sKO), 's_lshl_b32 s3, s%d, 15' % sW, 's_add_u32 s%d, s%d, s3' % (sKO, sKO), 's_add_u32 s%d, s%d, 0x%x' % (sKO, sKO, OB),
             's_mov_b32 s%d, 0x3f803f80' % sT1]
    pidx = {}
    def prd(n):
        tau, kap = n >> 3, n & 7; s = n % 8
        for u in range(2):
            pidx[n] = g.ds('ds_read_b64_tr_b16 v[%d:%d], v%d offset:%d', PR + 4 * s + 2 * u, PR + 4 * s + 2 * u + 1, vP + u + (2 if kap >= 4 else 0), (kap & 3) * 16384)
    for ks in range(32):
        g.wait_ds(idx[ks])
        if ks == 16: g('s_barrier')
        g('v_mfma_f32_32x32x16_bf16 v[%d:%d], v[%d:%d], v[%d:%d], %s', SA, SA + 15, RA + 4 * (ks % 8), RA + 4 * (ks % 8) + 3, RB_ + 4 * (ks % 8), RB_ + 4 * (ks % 8) + 3,
          '0' if ks == 0 else 'v[%d:%d]' % (SA, SA + 15))
        if ks + 7 < 32: rd(ks + 7)
        else: prd(ks + 7 - 32)
        for _ in range(3):
            if fill: g(fill.pop(0))
    assert not fill
    g.stamp(6)
    vM, vL = 121, 122
    g('v_max3_f32 v%d, v%d, v%d, v%d', vM, SA, SA + 1, SA + 2)
    for i in range(3, 15, 2): g('v_max3_f32 v%d, v%d, v%d, v%d', vM, vM, SA + i, SA + i + 1)
    g('v_max_f32 v%d, v%d, v%d', vM, vM, SA + 15)
    g.allreduce('v_max_f32', [vM], 123, steps=(), p16=False)
    g('ds_write_b32 v%d, v%d offset:8192', t4, vM)
    g('s_waitcnt lgkmcnt(0)\ns_barrier')
    g('ds_read_b128 v[124:127], v%d offset:8192\ns_waitcnt lgkmcnt(0)', t3)
    g('v_max3_f32 v%d, v124, v125, v126\nv_max_f32 v%d, v%d, v127', vM, vM, vM)
    for i in range(16): g('v_sub_f32 v%d, v%d, v%d', SA + i, SA + i, vM)
    for i in range(16): g('v_exp_f32 v%d, v%d', SA + i, SA + i)
    for i in range(8): g('v_cvt_pk_bf16_f32 v%d, v%d, v%d', PP + i, SA + 2 * i, SA + 2 * i + 1)
    g('ds_write_b128 v%d, v[%d:%d]\nds_write_b128 v%d, v[%d:%d] offset:1024', t5, PP, PP + 3, t5, PP + 4, PP + 7)
    for i in range(8): g('v_dot2_f32_bf16 v%d, v%d, s%d, %s', vL, PP + i, sT1, '0' if i == 0 else 'v%d' % vL)
    g.allreduce('v_add_f32', [vL], 123, steps=(), p16=False)
    g('ds_write_b32 v%d, v%d offset:8704', t4, vL)
    g('s_waitcnt lgkmcnt(0)\ns_barrier')
    g.lg = 0
    for n in range(7): pidx[n] = -1
    pf = [g.ds('ds_read_b128 v[%d:%d], v2 offset:%d', RA + 4 * k, RA + 4 * k + 3, k * 1024) for k in range(8)]
    kls = g.ds('ds_read_b128 v[124:127], v%d offset:8704', t3)
    g.stamp(7)
    vCS = 123
    def cvt_tile(tau):
        o = []
        for i in range(8): o.append('v_cvt_pk_bf16_f32 v%d, v%d, v%d' % (PKO + 8 * (tau & 1) + i, OA + 16 * tau + 2 * i, OA + 16 * tau + 2 * i + 1))
        r = PKO + 8 * (tau & 1)
        if tau == 0: o.append('v_add3_u32 v%d, v%d, v%d, v%d' % (vCS, r, r + 1, r + 2)); o.append('v_add_u32 v%d, v%d, v%d' % (vCS, vCS, r + 3))
        else: o.append('v_add3_u32 v%d, v%d, v%d, v%d' % (vCS, vCS, r, r + 1)); o.append('v_add3_u32 v%d, v%d, v%d, v%d' % (vCS, vCS, r + 2, r + 3))
        o.append('v_add3_u32 v%d, v%d, v%d, v%d' % (vCS, vCS, r + 4, r + 5)); o.append('v_add3_u32 v%d, v%d, v%d, v%d' % (vCS, vCS, r + 6, r + 7))
        for gam in range(2):
            c = (4 * (tau & 1) + gam) << 4
            if c: o.append('v_xor_b32 v%d, %d, v%d' % (t3 + gam, c, vS))
            o.append(('ds', 'ds_write_b128 v%d, v[%d:%d]' % ((t3 + gam) if c else vS, r + 4 * gam, r + 4 * gam + 3)))
        return o
    rb = {}
    def readback(sig):
        return [('dsr', i, sig) for i in range(4)]
    def stores(sig):
        return [('st', i, sig) for i in range(4)]
    def emit(x):
        if isinstance(x, str): g(x)
        elif x[0] == 'ds': g.ds(x[1])
        elif x[0] == 'dsr': rb[x[1]] = g.ds('ds_read_b128 v[%d:%d], v%d offset:%d', RBK + 4 * x[1], RBK + 4 * x[1] + 3, vR, x[1] * 1024)
        elif x[0] == 'st':
            g.wait_ds(rb[x[1]])
            g('s_add_u32 s3, s%d, %d', sKO, x[1] << 20)
            g.vmem('buffer_store_dwordx4 v[%d:%d], v%d, %s, s3 offen offset:%d sc1', RBK + 4 * x[1], RBK + 4 * x[1] + 3, vO, q(WS), x[2] * 128)
        elif x[0] == 'stat':
            lp = g.label('A')
            g('s_cmp_lg_u32 s%d, 0\ns_cbranch_scc1 %s', sW, lp)
            g.wait_ds(kls)
            g('v_add_f32 v124, v124, v125\nv_add_f32 v126, v126, v127\nv_add_f32 v%d, v124, v126\nv_min_u32 v%d, -2, v%d', vL, vL, vL)
            g('v_mov_b32 v124, v%d\nv_mov_b32 v125, v%d\nv_lshlrev_b32 v126, 3, v1', vM, vL)
            g('s_lshl_b32 s3, s%d, 8\ns_add_u32 s3, s3, 0x%x\ns_mov_b32 exec_hi, 0', sA, ST)
            g('buffer_store_dwordx2 v[124:125], v126, %s, s3 offen sc1\ns_mov_b64 exec, -1', q(WS))
            g('%s:', lp)
    sched = {n: [] for n in range(32)}
    sched[0] = [('stat',)]
    def spread(items, n0, per):
        n = n0
        while items:
            sched[n] += items[:per]; items = items[per:]; n += 1
        return n
    spread(cvt_tile(0), 10, 3)
    n = spread(cvt_tile(1), 18, 4)
    n = spread(readback(0), n, 4)
    spread(stores(0), n + 1, 2)
    spread(cvt_tile(2), 27, 4)
    for n in range(32):
        tau, kap = n >> 3, n & 7
        need = max(pidx[n], pf[kap] if n < 8 else -1)
        if need >= 0: g.wait_ds(need)
        g('v_mfma_f32_32x32x16_bf16 v[%d:%d], v[%d:%d], v[%d:%d], %s', OA + 16 * tau, OA + 16 * tau + 15, PR + 4 * (n % 8), PR + 4 * (n % 8) + 3, RA + 4 * kap, RA + 4 * kap + 3,
          '0' if kap == 0 else 'v[%d:%d]' % (OA + 16 * tau, OA + 16 * tau + 15))
        m = n + 7
        if m < 32:
            if m & 7 == 0:
                g('v_xor_b32 v%d, %d, v%d\nv_xor_b32 v%d, %d, v%d\nv_add_u32 v%d, 8192, v%d', vP, (m >> 3) << 6, vX, vP + 1, ((m >> 3) << 6) | 32, vX, vP + 1, vP + 1)
            if m & 7 == 4 and m > 8:
                g('v_add_u32 v%d, 0x10000, v%d\nv_add_u32 v%d, 0x10000, v%d', vP + 2, vP, vP + 3, vP + 1)
            prd(m)
        for x in sched[n]: emit(x)
    for x in cvt_tile(3) + readback(1): emit(x)
    g.allreduce('v_add_u32', [vCS], 124, steps=(), p16=False)
    g('v_and_b32 v%d, 0x7fffffff, v%d\nv_lshlrev_b32 v126, 2, v1', vCS, vCS)
    for x in stores(1): emit(x)
    g('s_lshl_b32 s3, s%d, 9\ns_lshl_b32 s%d, s%d, 7\ns_add_u32 s3, s3, s%d\ns_add_u32 s3, s3, 0x%x\ns_mov_b32 exec_hi, 0', sA, sT1, sW, sT1, CK)
    g('buffer_store_dword v%d, v126, %s, s3 offen sc1\ns_mov_b64 exec, -1', vCS, q(WS))
    g.stamp(8)
    g('s_cmp_ge_u32 s%d, 14\ns_cbranch_scc1 L_Aend', sJ)
    sFG = sS
    g('s_mul_i32 s%d, s%d, 14\ns_add_u32 s%d, s%d, s%d', sFG, sX, sFG, sFG, sJ)
    g('s_barrier')
    L_G, L_D, L_H, L_R, L_X1, L_Z = 32768, 65536, 0, 8192, 16384, 24576
    GF, DF, MP, GA, C1, SB, X1, XP = 16, 48, 64, 112, 120, 128, 136, 64
    g('v_lshrrev_b32 v%d, 1, v1\nv_mul_u32_u24 v%d, 3584, v%d\nv_and_b32 v%d, 1, v1\nv_lshl_add_u32 v%d, v%d, 4, v%d', t0, t0, t0, t1, t0, t1, t0)
    g('s_mul_i32 s3, s%d, %d\ns_lshl_b32 s%d, s%d, 5\ns_add_u32 s3, s3, s%d', sW, 128 * 3584, sT1, sFG, sT1)
    g('s_lshl_b32 s%d, s%d, 13\ns_add_u32 s%d, s%d, %d', sT1, sW, sT1, sT1, L_G)
    for i in range(4):
        for mu, srd in enumerate((WG, WU)):
            g('s_add_u32 m0, s%d, %d', sT1, mu * 4096 + i * 1024)
            kg_ = g.vmem('buffer_load_dwordx4 v%d, %s, s3 offen nt lds', t0, q(srd))
        if i < 3: g('s_add_u32 s3, s3, %d', 32 * 3584)
    g('v_lshrrev_b32 v%d, 4, v1\nv_and_b32 v%d, 15, v1\nv_lshlrev_b32 v%d, 2, v%d\nv_xor_b32 v%d, v%d, v%d\nv_lshlrev_b32 v%d, 4, v%d\nv_lshl_add_u32 v%d, v%d, 10, v%d',
      t1, t2, t3, t1, t3, t3, t2, t3, t3, t3, t1, t3)
    g('s_lshl_b32 s3, s%d, 14\ns_lshl_b32 s%d, s%d, 8\ns_add_u32 s3, s3, s%d', sFG, sT1, sW, sT1)
    g('s_lshl_b32 s%d, s%d, 12\ns_add_u32 s%d, s%d, %d', sT1, sW, sT1, sT1, L_D)
    for i in range(4):
        g('s_add_u32 m0, s%d, %d', sT1, i * 1024)
        kd_ = g.vmem('buffer_load_dwordx4 v%d, %s, s3 offen nt lds', t3, q(WD))
        if i < 3: g('s_add_u32 s3, s3, 4096')
    g('s_lshl_b32 s3, s%d, 10', sW)
    kx = g.vmem('buffer_load_dwordx4 v[4:7], v2, %s, s3 offen', q(XX))
    g('s_lshl_b32 s3, s%d, 12\ns_add_u32 s3, s3, 0x%x', sW, MB)
    g('s_mov_b32 s%d, 0x3f80\ns_mov_b32 s%d, 1.0', sKO, sLOC)
    def body():
        k0 = g.vm
        for p in range(4):
            g('s_add_u32 s%d, s3, %d', sT1, p * 16384)
            for v in range(3):
                r = MP + 12 * p + 4 * v
                g.vmem('buffer_load_dwordx4 v[%d:%d], v2, %s, s%d offen offset:%d sc1', r, r + 3, q(WS), sT1, v * 1024)
        chk_poison(g, MP, 12, k0, t4)
    g.poll(body, P.slp_mb)
    def sum_bf(dst, src, first):
        for d in range(4):
            if first is not None:
                g('v_dot2_f32_bf16 v%d, v%d, s%d, %s', dst + 2 * d, src + d, sKO, first)
                g('v_dot2_f32_bf16 v%d, v%d, s%d, %s', dst + 2 * d + 1, src + d, sLOC, first)
            else:
                g('v_dot2c_f32_bf16 v%d, s%d, v%d', dst + 2 * d, sKO, src + d)
                g('v_dot2c_f32_bf16 v%d, s%d, v%d', dst + 2 * d + 1, sLOC, src + d)
    for p in range(4):
        sum_bf(GA, MP + 12 * p, '0' if p == 0 else None)
        sum_bf(SB, MP + 12 * p + 4, '0' if p == 0 else None)
        sum_bf(C1, MP + 12 * p + 8, '1.0' if p == 0 else None)
    g.unpack8(X1, 4)
    g('v_bfe_u32 v%d, v1, 2, 2\nv_and_b32 v%d, 3, v1', t2, t4)
    g('v_lshl_add_u32 v%d, v%d, 3, v%d\nv_lshlrev_b32 v%d, 5, v%d\nv_lshl_add_u32 v%d, v%d, 3, v%d', t0, t1, t2, t0, t0, t0, t4, t0)
    g('s_lshl_b32 s3, s%d, 13\ns_add_u32 s3, s3, %d\nv_add_u32 v%d, s3, v%d', sW, L_G, t0, t0)
    for mu in range(2):
        for ks in range(4):
            for u in range(2):
                r = GF + 16 * mu + 4 * ks + 2 * u
                g('ds_read_b64_tr_b16 v[%d:%d], v%d offset:%d', r, r + 1, t0, mu * 4096 + ks * 1024 + u * 128)
    g('v_lshl_add_u32 v%d, v%d, 2, v%d\nv_lshlrev_b32 v%d, 8, v%d\nv_lshl_add_u32 v%d, v%d, 6, v%d\nv_lshl_add_u32 v%d, v%d, 4, v%d', t0, t1, t2, t0, t0, t0, t2, t0, t0, t4, t0)
    g('s_lshl_b32 s3, s%d, 12\ns_add_u32 s3, s3, %d\nv_add_u32 v%d, s3, v%d', sW, L_D, t0, t0)
    for tp in range(4):
        if tp: g('v_xor_b32 v%d, %d, v%d', t3, tp << 6, t0)
        for t in range(2):
            r = DF + 4 * tp + 2 * t
            g('ds_read_b64_tr_b16 v[%d:%d], v%d offset:%d', r, r + 1, t3 if tp else t0, 8 * t)
    vHW, vHR, vRW, vRR, vDO, vX1 = 100, 101, 102, 103, 104, 105
    g('s_mul_i32 s3, s%d, 1088\nv_add_u32 v%d, s3, v2', sW, vHW)
    g('v_mul_u32_u24 v%d, 1088, v%d\nv_lshl_add_u32 v%d, v%d, 4, v%d\ns_lshl_b32 s3, s%d, 8\nv_add_u32 v%d, s3, v%d', vHR, t4, vHR, t1, vHR, sW, vHR, vHR)
    g('v_lshl_add_u32 v%d, v%d, 2, v%d\nv_lshlrev_b32 v%d, 4, v%d\nv_add_u32 v%d, %d, v%d\ns_lshl_b32 s3, s%d, 9\nv_add_u32 v%d, s3, v%d', vRR, t4, t1, vRR, vRR, vRR, L_R, vRR, sW, vRW, vRR)
    g('v_lshlrev_b32 v%d, 10, v%d\nv_lshl_add_u32 v%d, v%d, 6, v%d\nv_lshl_add_u32 v%d, v%d, 4, v%d', vDO, t4, vDO, t2, vDO, vDO, t1, vDO)
    g('v_lshlrev_b32 v%d, 5, v1\ns_lshl_b32 s3, s%d, 11\ns_add_u32 s3, s3, %d\nv_add_u32 v%d, s3, v%d', vX1, sW, L_X1, vX1, vX1)
    MK = 106
    for tp in range(4):
        g('v_cmp_eq_u32 vcc, %d, v%d\nv_cndmask_b32 v%d, 0, -1, vcc', tp, t2, MK + tp)
    vFC, GBV = 110, 98
    g('v_and_b32 v%d, 7, v1\nv_lshlrev_b32 v%d, 3, v%d\nv_lshrrev_b32 v%d, 5, v1\nv_lshl_add_u32 v%d, v%d, 2, v%d\nv_bfe_u32 v%d, v1, 4, 1\nv_lshl_add_u32 v%d, v%d, 1, v%d',
      vFC, vFC, vFC, t0, vFC, t0, vFC, t0, vFC, t0, vFC)
    lnf = g.label('A')
    g('s_cmp_ge_u32 s%d, 4\ns_cbranch_scc1 %s', sJ, lnf)
    g('v_lshlrev_b32 v%d, 1, v%d', t0, vFC)
    g('s_lshl_b32 s3, s%d, 12\ns_lshl_b32 s%d, s%d, 7\ns_add_u32 s3, s3, s%d\ns_add_u32 s3, s3, 0x%x', sJ, sT1, sX, sT1, MB + 3072)
    def body():
        for p in range(4):
            g('s_add_u32 s%d, s3, %d', sT1, p * 16384)
            g('buffer_load_dword v%d, v%d, %s, s%d offen sc1', 144 + p, t0, q(WS), sT1)
        g('s_waitcnt vmcnt(0)')
        g('v_max3_u32 v%d, v144, v145, v146\nv_max_u32 v%d, v%d, v147\nv_cmp_eq_u32 vcc, -1, v%d', t3, t3, t3, t3)
    g.poll(body, P.slp_mb)
    for p in range(4):
        g('v_dot2_f32_bf16 v%d, v%d, s%d, %s', GBV, 144 + p, sKO, '0' if p == 0 else 'v%d' % GBV)
        g('v_dot2_f32_bf16 v%d, v%d, s%d, %s', GBV + 1, 144 + p, sLOC, '0' if p == 0 else 'v%d' % (GBV + 1))
    g('%s:', lnf)
    g('s_waitcnt lgkmcnt(0)')
    g('s_lshl_b32 s3, s%d, 10\ns_add_u32 s3, s3, 0x%x', sW, XB)
    g.stamp(9)
    if P.pre_x: g('s_sleep %d', P.pre_x)
    AO = 144
    def body():
        k0 = g.vm
        for p in range(8):
            g('s_add_u32 s%d, s3, %d', sT1, p * 4096)
            g.vmem('buffer_load_dwordx4 v[%d:%d], v2, %s, s%d offen sc1', XP + 4 * p, XP + 4 * p + 3, q(WS), sT1)
        for p in range(8):
            g.wait_vm(k0 + p)
            sum_bf(AO, XP + 4 * p, '0' if p == 0 else None)
            if p == 1: g('v_max_u32 v%d, v%d, v%d', t3, XP + 3, XP + 7)
            elif p > 1 and p & 1: g('v_max3_u32 v%d, v%d, v%d, v%d', t3, t3, XP + 4 * p - 1, XP + 4 * p + 3)
        g('v_cmp_eq_u32 vcc, -1, v%d', t3)
    g.poll(body, P.slp_x)
    g.stamp(10)
    for i in range(0, 8, 2): g('v_pk_fma_f32 v[%d:%d], v[%d:%d], v[%d:%d], v[%d:%d]', X1 + i, X1 + i + 1, GA + i, GA + i + 1, AO + i, AO + i + 1, X1 + i, X1 + i + 1)
    g('v_pk_mul_f32 v[152:153], v[%d:%d], v[%d:%d]\nv_pk_add_f32 v[154:155], v[%d:%d], v[%d:%d]', X1, X1 + 1, X1, X1 + 1, X1, X1 + 1, X1 + 2, X1 + 3)
    for i in range(2, 8, 2):
        g('v_pk_fma_f32 v[152:153], v[%d:%d], v[%d:%d], v[152:153]', X1 + i, X1 + i + 1, X1 + i, X1 + i + 1)
        if i > 2: g('v_pk_add_f32 v[154:155], v[154:155], v[%d:%d]', X1 + i, X1 + i + 1)
    g('v_add_f32 v152, v152, v153\nv_add_f32 v153, v154, v155')
    g('ds_write_b128 v%d, v[%d:%d]\nds_write_b128 v%d, v[%d:%d] offset:16', vX1, X1, X1 + 3, vX1, X1 + 4, X1 + 7)
    g.allreduce('v_add_f32', [152, 153], 154)
    g('v_mul_f32 v154, 0x%x, v153\nv_mul_f32 v152, 0x%x, v152\nv_fma_f32 v152, -v154, v154, v152\nv_max_f32 v152, 0, v152\nv_add_f32 v152, 0x%x, v152\nv_rsq_f32 v156, v152', f2u(1 / 512), f2u(1 / 512), f2u(1e-5))
    g('v_mul_f32 v154, v154, v156\nv_sub_f32 v154, 0, v154')
    for i in range(0, 8, 2): g('v_pk_fma_f32 v[%d:%d], v[%d:%d], v[156:157], v[154:155] op_sel_hi:[1,0,0]', AO + i, AO + i + 1, X1 + i, X1 + i + 1)
    for i in range(0, 8, 2): g('v_pk_fma_f32 v[%d:%d], v[%d:%d], v[%d:%d], v[%d:%d]', AO + i, AO + i + 1, AO + i, AO + i + 1, C1 + i, C1 + i + 1, SB + i, SB + i + 1)
    for i in range(4): g('v_cvt_pk_bf16_f32 v%d, v%d, v%d', 152 + i, AO + 2 * i, AO + 2 * i + 1)
    g('ds_write_b128 v%d, v[152:155]', vHW)
    g('s_waitcnt lgkmcnt(0)\ns_barrier')
    for ks in range(4): g('ds_read_b128 v[%d:%d], v%d offset:%d', XP + 4 * ks, XP + 4 * ks + 3, vHR, ks * 64)
    D = 160
    for ks in range(4):
        g('s_waitcnt lgkmcnt(%d)', 3 - ks)
        for t in range(2):
            g('v_mfma_f32_16x16x32_bf16 v[%d:%d], v[%d:%d], v[%d:%d], %s', D + 4 * t, D + 4 * t + 3, GF + 16 * t + 4 * ks, GF + 16 * t + 4 * ks + 3, XP + 4 * ks, XP + 4 * ks + 3,
              '0' if ks == 0 else 'v[%d:%d]' % (D + 4 * t, D + 4 * t + 3))
    g('s_lshl_b32 s3, s%d, 12\ns_lshl_b32 s%d, s%d, 8\ns_add_u32 s3, s3, s%d\ns_add_u32 s3, s3, 0x%x', sFG, sT1, sW, sT1, DB)
    g.execm(0x000f000f, 0x000f000f)
    g('ds_write_b128 v%d, v[%d:%d]\nds_write_b128 v%d, v[%d:%d] offset:256', vRW, D, D + 3, vRW, D + 4, D + 7)
    g.execm(0xffffffff, 0xffffffff)
    g('s_waitcnt lgkmcnt(0)\ns_barrier')
    for w in range(4):
        for mu in range(2): g('ds_read_b128 v[%d:%d], v%d offset:%d', XP + 8 * w + 4 * mu, XP + 8 * w + 4 * mu + 3, vRR, w * 512 + mu * 256)
    for w in range(1, 4):
        g('s_waitcnt lgkmcnt(%d)', 6 - 2 * w)
        for i in range(0, 8, 2): g('v_pk_add_f32 v[%d:%d], v[%d:%d], v[%d:%d]', XP + i, XP + i + 1, XP + i, XP + i + 1, XP + 8 * w + i, XP + 8 * w + i + 1)
    for i in range(4): g('v_mul_f32 v%d, 0x%x, v%d', XP + i, f2u(-math.log2(math.e)), XP + i)
    for i in range(4): g('v_exp_f32 v%d, v%d', XP + i, XP + i)
    for i in range(4): g('v_add_f32 v%d, 1.0, v%d', XP + i, XP + i)
    for i in range(4): g('v_rcp_f32 v%d, v%d', XP + i, XP + i)
    for i in range(4): g('v_mul_f32 v%d, v%d, v%d', XP + i, XP + i, XP + 4 + i)
    g('v_cvt_pk_bf16_f32 v%d, v%d, v%d\nv_cvt_pk_bf16_f32 v%d, v%d, v%d', XP + 8, XP, XP + 1, XP + 9, XP + 2, XP + 3)
    for tp in range(4): g('v_and_b32 v%d, v%d, v%d\nv_and_b32 v%d, v%d, v%d', XP + 10 + 2 * tp, MK + tp, XP + 8, XP + 11 + 2 * tp, MK + tp, XP + 9)
    for tp in range(4):
        for t in range(2):
            g('v_mfma_f32_16x16x16_bf16 v[%d:%d], v[%d:%d], v[%d:%d], %s', D + 4 * t, D + 4 * t + 3, DF + 4 * tp + 2 * t, DF + 4 * tp + 2 * t + 1, XP + 10 + 2 * tp, XP + 11 + 2 * tp,
              '0' if tp == 0 else 'v[%d:%d]' % (D + 4 * t, D + 4 * t + 3))
    g.pack8(152, D)
    g('buffer_store_dwordx4 v[152:155], v%d, %s, s3 offen sc1', vDO, q(WS))
    g.stamp(11)
    g('s_cmp_ge_u32 s%d, 4\ns_cbranch_scc1 L_Aend', sJ)
    g('v_lshrrev_b32 v%d, 3, v1\nv_lshlrev_b32 v%d, 12, v%d\nv_and_b32 v%d, 7, v1\nv_lshl_add_u32 v%d, v%d, 4, v%d', t0, t0, t0, t1, t0, t1, t0)
    g('s_lshl_b32 s3, s%d, 15\ns_lshl_b32 s%d, s%d, 10\ns_add_u32 s3, s3, s%d\ns_lshl_b32 s%d, s%d, 7\ns_add_u32 s3, s3, s%d\ns_add_u32 s3, s3, 0x%x', sW, sT1, sJ, sT1, sT1, sX, sT1, DB)
    g('v_lshlrev_b32 v%d, 3, v1\nv_add_u32 v%d, %d, v%d\ns_lshl_b32 s%d, s%d, 9\nv_add_u32 v%d, s%d, v%d', t1, t1, L_Z, t1, sT1, sW, t2, sT1, t1)
    g('s_lshl_b32 s%d, s%d, 11\ns_lshl_b32 s%d, s%d, 8\ns_add_u32 s%d, s%d, s%d\ns_add_u32 s%d, s%d, %d', sT1, sJ, sT2, sX, sT1, sT1, sT2, sT1, sT1, L_X1)
    g('v_lshlrev_b32 v%d, 2, v%d\nv_add_u32 v%d, s%d, v%d\nds_read_b64 v[96:97], v%d', t4, vFC, t4, sT1, t4, t4)
    if P.pre_d: g('s_sleep %d', P.pre_d)
    def body():
        k0 = g.vm
        for i in range(4):
            g('s_add_u32 s%d, s3, %d', sT1, i * 131072)
            g.vmem('buffer_load_dwordx4 v[%d:%d], v%d, %s, s%d offen sc1', XP + 4 * i, XP + 4 * i + 3, t0, q(WSD), sT1)
        for i in range(4):
            g.wait_vm(k0 + i)
            sum_bf(AO, XP + 4 * i, '0' if i == 0 else None)
        g('v_max3_u32 v%d, v%d, v%d, v%d\nv_max_u32 v%d, v%d, v%d\nv_cmp_eq_u32 vcc, -1, v%d', t3, XP + 3, XP + 7, XP + 11, t3, t3, XP + 15, t3)
    g.poll(body, P.slp_d)
    g.stamp(12)
    for i in range(4): g('v_permlane32_swap_b32 v%d, v%d', AO + i, AO + 4 + i)
    for i in range(4): g('v_add_f32 v%d, v%d, v%d', AO + i, AO + i, AO + 4 + i)
    for i in range(2): g('v_permlane16_swap_b32 v%d, v%d', AO + i, AO + 2 + i)
    for i in range(2): g('v_add_f32 v%d, v%d, v%d', AO + i, AO + i, AO + 2 + i)
    for i in range(2): g('v_add_f32_dpp v%d, v%d, v%d row_ror:8 row_mask:0xf bank_mask:0xf', AO + i, AO + i, AO + i)
    g('ds_write_b64 v%d, v[%d:%d]', t2, AO, AO + 1)
    g('s_waitcnt lgkmcnt(0)\ns_barrier')
    g('s_cmp_lg_u32 s%d, 0\ns_cbranch_scc1 L_Aend', sW)
    for w in range(1, 4): g('ds_read_b64 v[%d:%d], v%d offset:%d', XP + 2 * w, XP + 2 * w + 1, t1, w * 512)
    g('s_lshl_b32 s3, s%d, 10\ns_lshl_b32 s%d, s%d, 7\ns_add_u32 s3, s3, s%d\nv_lshlrev_b32 v%d, 1, v%d', sJ, sT1, sX, sT1, t0, vFC)
    g('s_waitcnt lgkmcnt(0)')
    g('v_pk_add_f32 v[%d:%d], v[%d:%d], v[%d:%d]\nv_pk_add_f32 v[%d:%d], v[%d:%d], v[%d:%d]\nv_pk_add_f32 v[%d:%d], v[%d:%d], v[%d:%d]',
      AO, AO + 1, AO, AO + 1, XP + 2, XP + 3, XP + 4, XP + 5, XP + 4, XP + 5, XP + 6, XP + 7, AO, AO + 1, AO, AO + 1, XP + 4, XP + 5)
    g('v_pk_fma_f32 v[96:97], v[%d:%d], v[%d:%d], v[96:97]\nv_cvt_pk_bf16_f32 v96, v96, v97', GBV, GBV + 1, AO, AO + 1)
    g.execm(0x00ff00ff, 0x00ff00ff)
    g('buffer_store_dword v96, v%d, %s, s3 offen', t0, q(OUT))
    g('s_cmp_lg_u32 s%d, 0\ns_cbranch_scc1 L_Aend', sA)
    g('s_mov_b64 exec, 1\nv_mov_b32 v96, s%d\nv_mov_b32 v97, 0', sT)
    g('buffer_store_dword v96, v97, %s, 0 offen', q(WS))
    g('L_Aend:')
    g.stamp(13)
    epilogue(g)

def build(fn):
    g = G()
    prologue(g)
    role_F(g)
    role_A(g)
    g('L_end:\ns_endpgm')
    lines = hazard.fix(g.L)
    body = '\n'.join(lines) + '\n'
    s = file_wrap(['; @launch grid=(256,1,1) block=(256,1,1) lds=163840'], [kernel_wrap(K + '_kernel', body, 256)])
    open(fn, 'w').write(s)

if __name__ == '__main__':
    fn = sys.argv[1] if len(sys.argv) > 1 else 'k.s'
    for kv in sys.argv[2:]:
        k, v = kv.split('='); setattr(P, k, type(getattr(P, k))(int(v)))
    build(fn)
```

```python
import sys, math, struct
from asmlib import *
import hazard
def f2u(x): return struct.unpack('<I', struct.pack('<f', x))[0]
FL2 = 0x14000
FL = 0x10000
HB = 0x2000
CANQ = 0x1800
CANX = 0x1c00
QB = 0x40000
RG = 0x100000
QP = RG
P1 = RG + 128 * 1024
CB = P1
MB = P1 + 128 * 1024
ST = P1 + 192 * 1024
CK = P1 + 224 * 1024
XB = P1 + 288 * 1024
DB = P1 + 320 * 1024
DBEND = DB + 448 * 1024
OB = 0x400000
STAMP = 0x8000000
WS = 4
pX, pCKV, pWQ, pWUK, pWUV, pWO, pBX, pWG, pWU, pWD, pC, pWM, pOUT = 8, 10, 12, 14, 16, 18, 20, 22, 24, 26, 28, 30, 32
G0, G1, G2, WSD = 36, 40, 44, 48
def q(r): return 's[%d:%d]' % (r, r + 3)
sW, sX, sJ, sT, sSP, sLOC, sH, sQ, sA, sB, sS = 60, 61, 62, 63, 64, 65, 66, 67, 66, 67, 68
sT0, sT1, sT2, sT3, sT4 = 3, 69, 59, 58, 57
STB = 70
class P:
    stamps = False
    sset = 0
    cap1 = 4; n1 = 8; cap2 = 14
    qx = 0
    slp_h = 1; slp_q = 1; slp_qp = 2; slp_st = 3; slp_ob = 3; slp_c = 1; slp_mb = 4; slp_x = 3; slp_d = 2
    pre_ob = 0
    codepf = True
    force_global = False
    h_at = 4
    fdel = 0
    s0x = (3, 3, 4)
    fl_at = 24
    hdel = 0
    dbg = 0
    fcap = 63
    pre_h = 0
    gu_first = 2
    tcap = 63
    wo_late = 1
    gu_pf = 1
    can_x = 2
    ack_d = 1
    qp_lds = 1
SSETS = [
    set('iss land h S1 q S2 tailw stat ob S4 cb S5 S0 kvis kvw qp scor smax PV prep xb S6 db'.split()),
    set('ka iss wq land hiss h1 h S1 q S2 c_in silu x_in wm_in mfma bar0 S0 kvis kvw qp'.split()),
    set('qp qbar scor mx1 pv16 pvm PV dma mb wts prep tailw stat st_in obi ob lds S4 cb5 cb S5m S5'.split()),
    set('prep canx xb x1 ln bar1 mm bar2 sig S6 ack db cb S5'.split()),
]
class G(Asm):
    def __init__(self):
        super().__init__()
        self.lg = 0; self.vm = 0; self.ns = 0
    def ds(self, s, *a):
        self(s, *a); self.lg += 1; return self.lg - 1
    def vmem(self, s, *a):
        self(s, *a); self.vm += 1; return self.vm - 1
    def wait_ds(self, idx):
        self('s_waitcnt lgkmcnt(%d)', min(15, self.lg - idx - 1))
    def wait_vm(self, idx):
        self('s_waitcnt vmcnt(%d)', min(63, self.vm - idx - 1))
    def stamp(self, name):
        if P.stamps and (name in SSETS[P.sset] or name == 'end'):
            i = 13 if name == 'end' else self.ns
            if name != 'end': self.ns += 1
            assert self.ns <= 13
            self('s_memrealtime s[%d:%d] ; stamp %s %d %s', STB + 2 * i, STB + 2 * i + 1, self.role, i, name)
    def execm(self, lo, hi):
        if lo == 0xffffffff and hi == 0xffffffff: self('s_mov_b64 exec, -1')
        else: self('s_mov_b32 exec_lo, 0x%x\ns_mov_b32 exec_hi, 0x%x', lo, hi)
    def poll(self, body, sleep):
        l0 = self.label('P'); l1 = self.label('Q')
        self('%s:', l0)
        body()
        self('s_cbranch_vccz %s', l1)
        self('s_add_u32 s%d, s%d, 1\ns_cmp_gt_u32 s%d, 40000\ns_cbranch_scc1 %s', sSP, sSP, sSP, l1)
        if sleep: self('s_sleep %d', sleep)
        self('s_branch %s', l0)
        self('%s:', l1)
    def poll2(self, body, hook, sleep):
        lo = self.label('O')
        body(hook)
        self('s_cbranch_vccz %s', lo)
        self.poll(body, sleep)
        self('%s:', lo)
    def allreduce(self, op, rs, tmp, steps=(1, 2, 4, 8), p16=True, p32=True):
        for st in steps:
            for r in rs: self('%s_dpp v%d, v%d, v%d row_ror:%d row_mask:0xf bank_mask:0xf', op, r, r, r, st)
        for en, ins in ((p16, 'v_permlane16_swap_b32'), (p32, 'v_permlane32_swap_b32')):
            if not en: continue
            for k, r in enumerate(rs): self('v_mov_b32 v%d, v%d', tmp + k, r)
            for k, r in enumerate(rs): self('%s v%d, v%d', ins, r, tmp + k)
            for k, r in enumerate(rs): self('%s v%d, v%d, v%d', op, r, r, tmp + k)
    def unpack8(self, dst, src):
        for i in range(4):
            self('v_lshlrev_b32 v%d, 16, v%d\nv_and_b32 v%d, 0xffff0000, v%d', dst + 2 * i, src + i, dst + 2 * i + 1, src + i)
    def silu8(self, dst4, src4, t):
        self.unpack8(t, src4)
        for i in range(8): self('v_mul_f32 v%d, 0x%x, v%d', t + 8 + i, f2u(-math.log2(math.e)), t + i)
        for i in range(8): self('v_exp_f32 v%d, v%d', t + 8 + i, t + 8 + i)
        for i in range(8): self('v_add_f32 v%d, 1.0, v%d', t + 8 + i, t + 8 + i)
        for i in range(8): self('v_rcp_f32 v%d, v%d', t + 8 + i, t + 8 + i)
        for i in range(8): self('v_mul_f32 v%d, v%d, v%d', t + i, t + i, t + 8 + i)
        for i in range(4): self('v_cvt_pk_bf16_f32 v%d, v%d, v%d', dst4 + i, t + 2 * i, t + 2 * i + 1)
    def gemv8(self, D, W, B, bstride=4):
        for ks in range(4):
            for t in range(2):
                c = '0' if ks == 0 else 'v[%d:%d]' % (D + 4 * t, D + 4 * t + 3)
                self('v_mfma_f32_16x16x32_bf16 v[%d:%d], v[%d:%d], v[%d:%d], %s', D + 4 * t, D + 4 * t + 3,
                     W + 16 * t + 4 * ks, W + 16 * t + 4 * ks + 3, B + bstride * ks, B + bstride * ks + 3, c)
    def psum(self, D):
        for st in (4, 8):
            for i in range(8): self('v_add_f32_dpp v%d, v%d, v%d row_ror:%d row_mask:0xf bank_mask:0xf', D + i, D + i, D + i, st)
    def pack8(self, dst, D):
        for i in range(4): self('v_cvt_pk_bf16_f32 v%d, v%d, v%d', dst + i, D + 2 * i, D + 2 * i + 1)
        self('v_min_u32 v%d, -2, v%d', dst + 3, dst + 3)
    def trfrags(self, dst, vbase, ks_stride, u_stride):
        for t in range(2):
            for ks in range(4):
                for u in range(2):
                    r = dst + 16 * t + 4 * ks + 2 * u
                    i = self.ds('ds_read_b64_tr_b16 v[%d:%d], v%d offset:%d', r, r + 1, vbase, ks * ks_stride + u * u_stride + 8 * t)
        return i
    def srd(self, quad, ptr):
        self('s_mov_b64 s[%d:%d], s[%d:%d]', quad, quad + 1, ptr, ptr + 1)
        return q(quad)
    def store_lg(self, data, voff, soff):
        l0 = self.label('G'); l1 = self.label('G')
        self('s_cmp_eq_u32 s%d, 0\ns_cbranch_scc1 %s', sLOC, l0)
        self('buffer_store_dwordx4 v[%d:%d], v%d, %s, s%d offen', data, data + 3, voff, q(WS), soff)
        self('s_branch %s\n%s:', l1, l0)
        self('buffer_store_dwordx4 v[%d:%d], v%d, %s, s%d offen sc1', data, data + 3, voff, q(WS), soff)
        self('%s:', l1)
        self.vm += 1
def chk_poison(g, base, n, first_idx, acc):
    for i in range(0, n, 2):
        g.wait_vm(first_idx + min(i + 1, n - 1))
        a0 = base + 4 * i + 3; a1 = base + 4 * min(i + 1, n - 1) + 3
        if i == 0: g('v_max_u32 v%d, v%d, v%d', acc, a0, a1)
        else: g('v_max3_u32 v%d, v%d, v%d, v%d', acc, acc, a0, a1)
    g('v_cmp_eq_u32 vcc, -1, v%d', acc)
def prologue(g):
    if P.stamps: g('s_memrealtime s[%d:%d]', STB, STB + 1)
    g('s_cmp_ge_u32 s2, 256\ns_cbranch_scc1 L_end')
    g('s_load_dwordx8 s[24:31], s[0:1], 64\ns_load_dwordx16 s[8:23], s[0:1], 0\ns_load_dwordx2 s[4:5], s[0:1], 112\ns_load_dwordx2 s[32:33], s[0:1], 96')
    g('s_lshr_b32 s%d, s2, 3', sJ)
    if P.codepf:
        g('s_getpc_b64 s[100:101]\nL_pc:')
        g('s_and_b32 s3, s%d, 15\ns_lshl_b32 s3, s3, 11', sJ)
        g('v_and_b32 v4, 15, v0\nv_lshl_add_u32 v4, v4, 7, s3\nv_min_u32 v4, L_end-L_pc, v4')
        g('global_load_dword v255, v4, s[100:101]')
    g('v_lshrrev_b32 v3, 6, v0\nv_and_b32 v1, 63, v0\ns_and_b32 s%d, s2, 7', sX)
    g('v_readfirstlane_b32 s%d, v3\nv_lshlrev_b32 v2, 4, v1', sW)
    g('s_mov_b32 s%d, 0x1000000\ns_mov_b32 s%d, 0x20000', G0 + 2, G0 + 3)
    g('s_mov_b64 s[%d:%d], s[%d:%d]\ns_mov_b64 s[%d:%d], s[%d:%d]', G1 + 2, G1 + 3, G0 + 2, G0 + 3, G2 + 2, G2 + 3, G0 + 2, G0 + 3)
    g('s_mov_b32 s%d, 0x10000000\ns_mov_b32 s%d, s%d\ns_mov_b32 s%d, 0', WS + 2, WS + 3, G0 + 3, sSP)
    g('s_cmp_lt_u32 s%d, 16\ns_cbranch_scc1 L_F', sJ)
def kawait(g):
    g('s_waitcnt lgkmcnt(0)')
    g('s_load_dword s%d, s[%d:%d], 0', sT, WS, WS + 1)
def canary_wait(g, base, tmp):
    g('s_lshl_b32 s%d, s%d, 7\ns_add_u32 s%d, s%d, 0x%x\nv_mov_b32 v%d, 0', sT2, sX, sT2, sT2, base, tmp)
    def body():
        g('buffer_load_dword v%d, v%d, %s, s%d offen sc1\ns_waitcnt vmcnt(0)', tmp + 1, tmp, q(WS), sT2)
        g('v_cmp_ne_u32 vcc, s%d, v%d', sT, tmp + 1)
    g.poll(body, 1)
def canary_set(g, base, tmp):
    l = g.label('C')
    g('s_or_b32 vcc_lo, s%d, s%d\ns_cmp_lg_u32 vcc_lo, 0\ns_cbranch_scc1 %s', sJ, sW, l)
    g('s_lshl_b32 vcc_lo, s%d, 7\ns_add_u32 vcc_lo, vcc_lo, 0x%x\nv_mov_b32 v%d, vcc_lo\nv_mov_b32 v%d, s%d', sX, base, tmp, tmp + 1, sT)
    g('s_mov_b64 exec, 1\nbuffer_store_dword v%d, v%d, %s, 0 offen sc1\ns_mov_b64 exec, -1', tmp + 1, tmp, q(WS))
    g('%s:', l)
def flags_load(g, va, vd):
    g('v_and_b32 v%d, 31, v1\nv_lshlrev_b32 v%d, 7, v%d\ns_lshl_b32 s%d, s%d, 12\ns_add_u32 s%d, s%d, 0x%x', va, va, va, sT4, sW, sT4, sT4, FL2)
    return g.vmem('buffer_load_dword v%d, v%d, %s, s%d offen sc1', vd, va, q(WS), sT4)
def flags_check(g, va, vd):
    lok = g.label('K')
    g('v_cmp_ne_u32 vcc, s%d, v%d\ns_cbranch_vccz %s', sT, vd, lok)
    g('s_lshl_b32 s%d, s%d, 12\ns_add_u32 s%d, s%d, 0x%x', sT4, sW, sT4, sT4, FL2)
    def body():
        g('buffer_load_dword v%d, v%d, %s, s%d offen sc1\ns_waitcnt vmcnt(0)', vd, va, q(WS), sT4)
        g('v_cmp_ne_u32 vcc, s%d, v%d', sT, vd)
    g.poll(body, 4)
    g('%s:', lok)
def get_tag(g):
    g('s_waitcnt lgkmcnt(0)')
    g('s_mul_i32 s%d, s%d, 0x9E3779B1\ns_add_u32 s%d, s%d, 0x7F4A7C15', sT, sT, sT, sT)
def epilogue(g):
    if P.stamps:
        g('s_mov_b64 exec, -1\ns_waitcnt lgkmcnt(0)')
        g('s_mov_b32 s98, s%d\ns_mov_b32 s99, s%d', sSP, sLOC)
        for i in range(30): g('v_writelane_b32 v3, s%d, %d', STB + i, i)
        g('s_lshl_b32 s3, s2, 4\ns_add_u32 s3, s3, s%d\ns_lshl_b32 s3, s3, 7\ns_add_u32 s3, s3, 0x%x', sW, STAMP)
        g('v_lshlrev_b32 v4, 2, v1\ns_mov_b32 exec_hi, 0')
        g('buffer_store_dword v3, v4, %s, s3 offen', q(WS))
    g('s_endpgm')
def role_F(g):
    L_WQ, L_WUK, L_WUV, L_WO, L_WM, L_X, L_W, L_Y = 0, 32768, 65536, 98304, 131072, 147456, 152064, 152832
    vT, vH, vF, vE, vEP, vTR, vUK = 3, 4, 5, 6, 7, 8, 9
    t0, t1, t2, t3 = 10, 11, 12, 13
    FA, FB, PB, D, PK = 16, 48, 80, 112, 120
    g('L_F:')
    g.vm = 0; g.role = 'F'; g.ns = 1
    g('s_lshr_b32 s%d, s%d, 2\ns_lshl_b32 s3, s%d, 2\ns_add_u32 s%d, s%d, s3\ns_and_b32 s%d, s%d, 3', sH, sJ, sX, sH, sH, sQ, sJ)
    sTF = 68
    g('s_lshl_b32 s%d, s%d, 4\ns_add_u32 s%d, s%d, s%d', sTF, sX, sTF, sTF, sJ)
    g('v_lshrrev_b32 v%d, 4, v1\nv_and_b32 v%d, 15, v1', t0, t1)
    g('v_lshlrev_b32 v%d, 2, v%d\nv_xor_b32 v%d, v%d, v%d\nv_lshlrev_b32 v%d, 4, v%d\nv_lshl_add_u32 v%d, v%d, 13, v%d', t2, t0, t2, t2, t1, t2, t2, vT, t0, t2)
    kawait(g)
    g.stamp('ka')
    g('s_cmp_eq_u32 s%d, 4\ns_cbranch_scc1 L_FH', sW)
    if P.fdel: g('s_waitcnt lgkmcnt(0)')
    def dma256(ptr, lbase, n0=0, cap=63):
        srd = g.srd(G0, ptr)
        g('s_lshl_b32 s3, s%d, 2\ns_add_u32 s3, s3, s%d\ns_lshl_b32 s3, s3, 18\ns_lshl_b32 s%d, s%d, 8\ns_add_u32 s3, s3, s%d', sQ, sW, sT1, sH, sT1)
        g('s_lshl_b32 s%d, s%d, 13', sT1, sW)
        for i in range(8):
            if n0 + i >= cap: g('s_waitcnt vmcnt(%d)', cap - 1)
            g('s_add_u32 m0, s%d, %d', sT1, lbase + i * 1024)
            if i: g('s_add_u32 s3, s3, 32768')
            k = g.vmem('buffer_load_dwordx4 v%d, %s, s3 offen nt lds', vT, srd)
        return k
    dma256(pWQ, L_WQ, 0, P.fcap)
    dma256(pWUK, L_WUK, 8, P.fcap)
    g('s_getreg_b32 s%d, hwreg(HW_REG_XCC_ID, 0, 4)', sLOC)
    get_tag(g)
    g.stamp('iss')
    g('v_bfe_u32 v%d, v1, 2, 2\nv_and_b32 v%d, 3, v1', t2, t3)
    g('v_lshlrev_b32 v%d, 4, v%d', vE, t0)
    g('v_lshl_add_u32 v%d, v%d, 6, v%d', vF, t1, vE)
    g('v_lshl_add_u32 v%d, v%d, 15, v%d', vEP, t3, vE)
    g('v_lshl_add_u32 v%d, v%d, 6, v%d', vE, t3, vE)
    g('v_lshl_add_u32 v%d, v%d, 9, v%d', vH, t2, vE)
    g('v_lshl_add_u32 v%d, v%d, 3, v%d\nv_lshlrev_b32 v%d, 8, v%d', vTR, t0, t2, vTR, vTR)
    g('v_xor_b32 v14, s%d, v%d\nv_lshl_add_u32 v%d, v14, 6, v%d\nv_lshl_add_u32 v%d, v%d, 4, v%d', sW, t2, vTR, vTR, vTR, t3, vTR)
    g('v_lshl_add_u32 v%d, v%d, 3, v%d', vUK, t2, t3)
    g('s_lshl_b32 s3, s%d, 13\ns_add_u32 s3, s3, %d', sW, L_WUK)
    g('v_lshlrev_b32 v%d, 8, v%d\nv_add_u32 v%d, s3, v%d\nv_lshl_add_u32 v%d, v%d, 6, v%d\nv_lshl_add_u32 v%d, v%d, 4, v%d', vUK, vUK, vUK, vUK, vUK, t3, vUK, vUK, t0, vUK)
    sA0, sA1, sA2 = 3, sT1, sT2
    g('s_lshl_b32 s%d, s%d, 13\ns_add_u32 s%d, s%d, 0x%x\ns_add_u32 s%d, s%d, 4096', sA0, sQ, sA0, sA0, HB, sA1, sA0)
    g('s_lshl_b32 s%d, s%d, 11\ns_add_u32 s%d, s%d, 0x%x', sA2, sX, sA2, sA2, FL)
    g('v_lshlrev_b32 v%d, 7, v%d', t2, t1)
    g.vmem('buffer_load_dwordx2 v[14:15], v%d, %s, s%d offen sc1', t2, q(WS), sA2)
    g('s_waitcnt vmcnt(9)')
    g('s_barrier')
    g.stamp('wq')
    g.trfrags(FA, vTR, 8192, 1024)
    g('s_waitcnt vmcnt(0)')
    g.stamp('land')
    if P.dbg in (1, 2): g('s_branch L_Fend')
    lok = g.label('K')
    g('v_cmp_ne_u32 vcc, s%d, v14\ns_cbranch_vccz %s', sT, lok)
    def body():
        g('buffer_load_dwordx2 v[14:15], v%d, %s, s%d offen sc1\ns_waitcnt vmcnt(0)\nv_cmp_ne_u32 vcc, s%d, v14', t2, q(WS), sA2, sT)
    g.poll(body, 4)
    g('%s:', lok)
    if P.pre_h: g('s_sleep %d', P.pre_h)
    g.stamp('hiss')
    g('s_lshl_b32 s%d, s%d, 11\ns_add_u32 s%d, s%d, s%d', sA1, sW, sA0, sA0, sA1)
    g('s_lshl_b32 s%d, s%d, 10\ns_add_u32 s%d, s%d, %d\nv_add_u32 v%d, s%d, v2\nv_add_u32 v%d, %d, v2', sA1, sW, sA1, sA1, L_X, t2, sA1, t0, L_X)
    def body():
        g('buffer_load_dwordx4 v[%d:%d], v%d, %s, s%d offen sc1', PB, PB + 3, vH, q(WS), sA0)
        g('buffer_load_dwordx4 v[%d:%d], v%d, %s, s%d offen offset:256 sc1', PB + 4, PB + 7, vH, q(WS), sA0)
        g('s_waitcnt vmcnt(0)')
        g('v_xor_b32 v%d, s%d, v%d\nv_bitop3_b32 v%d, v%d, v%d, s%d bitop3:0xf6\nv_cmp_ne_u32 vcc, 0, v%d', t3, sT, PB + 1, t3, t3, PB + 6, sT, t3)
    g.poll(body, P.slp_h)
    g.stamp('h1')
    g('ds_write_b128 v%d, v[%d:%d]\ns_waitcnt lgkmcnt(0)\ns_barrier', t2, PB + 2, PB + 5)
    for ks in range(4): g('ds_read_b128 v[%d:%d], v%d offset:%d', PB + 4 * ks, PB + 4 * ks + 3, t0, ks * 1024)
    for ks in range(4):
        if ks: g('v_xor_b32 v%d, %d, v%d', t1, ks << 6, vUK)
        for t in range(2):
            r = FB + 16 * t + 4 * ks
            g.ds('ds_read_b128 v[%d:%d], v%d offset:%d', r, r + 3, t1 if ks else vUK, t * 1024)
    g('s_waitcnt lgkmcnt(8)')
    g.stamp('h')
    g.gemv8(D, FA, PB)
    g('v_cmp_ne_u32 vcc, s%d, v15', sLOC)
    g('s_lshl_b32 s%d, s%d, 13\ns_add_u32 s%d, s%d, 0x%x', sA1, sH, sA1, sA1, QB)
    g('s_lshl_b32 s%d, s%d, 11\ns_lshl_b32 s%d, s%d, 9\ns_add_u32 s%d, s%d, s%d', sA0, sW, sA2, sQ, sA0, sA0, sA2)
    g('s_cmp_eq_u64 vcc, 0\ns_cselect_b32 s%d, %d, 0', sLOC, 0 if P.force_global else 1)
    g('s_add_u32 s%d, s%d, s%d\ns_add_u32 s%d, s%d, 4096', sA0, sA0, sA1, sA2, sA1)
    g('v_bfe_u32 v%d, v1, 2, 1\nv_cmp_eq_u32 vcc, 0, v%d\nv_lshl_add_u32 v%d, v%d, 8, v%d\nv_mov_b32 v14, s%d', t3, t3, t3, t3, vE, sT)
    g.psum(D)
    for i in range(4): g('v_cvt_pk_bf16_f32 v%d, v%d, v%d', PB + i, D + 2 * i, D + 2 * i + 1)
    g('v_mov_b32 v%d, v%d\nv_cndmask_b32 v%d, v%d, v14, vcc\nv_cndmask_b32 v%d, v14, v%d, vcc\nv_mov_b32 v%d, v%d', PK, PB + 2, PK + 1, PB + 3, PK + 2, PB, PK + 3, PB + 1)
    g.execm(0x00ff00ff, 0x00ff00ff)
    g.store_lg(PK, t3, sA0)
    g.execm(0xffffffff, 0xffffffff)
    g.stamp('S1')
    if P.dbg == 3: g('s_branch L_Fend')
    def body(hook=None):
        k0 = g.vm
        for ks in range(4):
            for hf in range(2):
                r = PB + 8 * ks + 4 * hf
                g.vmem('buffer_load_dwordx4 v[%d:%d], v%d, %s, s%d offen offset:%d sc1', r, r + 3, vH, q(WS), sA1 if ks < 2 else sA2, (ks & 1) * 2048 + hf * 256)
        if hook: hook()
        for ks in range(4):
            g.wait_vm(k0 + 1 + 2 * ks)
            if ks == 0: g('v_xor_b32 v%d, s%d, v%d', t3, sT, PB + 1)
            else: g('v_bitop3_b32 v%d, v%d, v%d, s%d bitop3:0xf6', t3, t3, PB + 8 * ks + 1, sT)
            g('v_bitop3_b32 v%d, v%d, v%d, s%d bitop3:0xf6', t3, t3, PB + 8 * ks + 6, sT)
        g('v_cmp_ne_u32 vcc, 0, v%d', t3)
    g.poll(body, P.slp_q)
    g('s_waitcnt lgkmcnt(0)')
    g.stamp('q')
    g.gemv8(D, FB, PB + 2, 8)
    g('s_lshl_b32 s%d, s%d, 8\ns_lshl_b32 s%d, s%d, 6\ns_add_u32 s%d, s%d, s%d\ns_add_u32 s%d, s%d, 0x%x', sA0, sTF, sA2, sW, sA0, sA0, sA2, sA0, sA0, QP)
    g('s_mov_b32 s%d, 0x%x', sA2, f2u(128 ** -0.5 * math.log2(math.e)))
    g.psum(D)
    for i in range(8): g('v_mul_f32 v%d, s%d, v%d', D + i, sA2, D + i)
    g.pack8(PK, D)
    if P.qp_lds:
        g('s_lshl_b32 s%d, s%d, 6\ns_add_u32 s%d, s%d, %d', sA2, sW, sA2, sA2, L_Y)
        g('v_and_b32 v14, 3, v1\nv_lshrrev_b32 v15, 4, v1\nv_lshlrev_b32 v15, 4, v15\nv_lshl_add_u32 v14, v14, 8, v15\nv_add_u32 v14, s%d, v14', sA2)
        g.execm(0x000f000f, 0x000f000f)
        g('ds_write_b128 v14, v[%d:%d]', PK, PK + 3)
        g.execm(0xffffffff, 0xffffffff)
        g('v_add_u32 v14, %d, v2\nv_lshrrev_b32 v15, 4, v1\nv_lshlrev_b32 v15, 15, v15\nv_and_b32 v13, 15, v1\nv_lshl_add_u32 v15, v13, 4, v15', L_Y)
        g('s_waitcnt lgkmcnt(0)\ns_barrier')
        lp = g.label('F')
        g('s_cmp_lg_u32 s%d, 0\ns_cbranch_scc1 %s', sW, lp)
        g('ds_read_b128 v[%d:%d], v14\ns_waitcnt lgkmcnt(0)', PK, PK + 3)
        g('buffer_store_dwordx4 v[%d:%d], v15, %s, s%d offen sc1', PK, PK + 3, q(WS), sA0)
        g('%s:', lp)
    else:
        g.execm(0x000f000f, 0x000f000f)
        g.vmem('buffer_store_dwordx4 v[%d:%d], v%d, %s, s%d offen sc1', PK, PK + 3, vEP, q(WS), sA0)
        g.execm(0xffffffff, 0xffffffff)
    g.stamp('S2')
    if P.dbg == 4: g('s_branch L_Fend')
    MF, SF, ST_ = 128, 160, 176
    g('v_and_b32 v%d, 3, v1\nv_lshrrev_b32 v%d, 4, v1\nv_lshlrev_b32 v%d, 4, v%d\nv_lshl_add_u32 v%d, v%d, 10, v%d', t3, t0, t2, t0, t2, t3, t2)
    g('s_lshl_b32 s3, s%d, 8', sQ)
    kc = g.vm
    srd = g.srd(G1, pC)
    for ks in range(4): g.vmem('buffer_load_dwordx4 v[%d:%d], v%d, %s, s3 offen offset:%d', PB + 4 * ks, PB + 4 * ks + 3, t2, srd, ks * 64)
    dma256(pWUV, L_WUV, 4, P.tcap)
    srd = g.srd(G1, pWM)
    g('v_lshrrev_b32 v%d, 3, v1\nv_mul_u32_u24 v%d, 6144, v%d\nv_and_b32 v%d, 7, v1\nv_lshl_add_u32 v%d, v%d, 4, v%d', t0, t0, t0, t1, t0, t1, t0)
    g('s_lshl_b32 s3, s%d, 2\ns_add_u32 s3, s3, s%d\ns_mul_i32 s3, s3, %d\ns_lshl_b32 s%d, s%d, 7\ns_add_u32 s3, s3, s%d\ns_add_u32 s3, s3, 2048', sQ, sW, 32 * 6144, sT1, sH, sT1)
    g('s_lshl_b32 s%d, s%d, 12\ns_add_u32 s%d, s%d, %d', sT1, sW, sT1, sT1, L_WM)
    for i in range(4):
        g('s_add_u32 m0, s%d, %d', sT1, i * 1024)
        km = g.vmem('buffer_load_dwordx4 v%d, %s, s3 offen nt lds', t0, srd)
        if i < 3: g('s_add_u32 s3, s3, %d', 8 * 6144)
    def wo_dma():
        srd = g.srd(G0, pWO)
        g('v_lshrrev_b32 v155, 2, v1\nv_lshlrev_b32 v155, 10, v155\nv_and_b32 v156, 3, v1\nv_lshl_add_u32 v155, v156, 4, v155')
        g('s_lshl_b32 s%d, s%d, 2\ns_add_u32 s%d, s%d, s%d\ns_lshl_b32 s%d, s%d, 17\ns_lshl_b32 s%d, s%d, 6\ns_add_u32 s%d, s%d, s%d', sT3, sX, sT3, sT3, sW, sT3, sT3, sT4, sJ, sT3, sT3, sT4)
        g('s_lshl_b32 s%d, s%d, 13', sT4, sW)
        for i in range(8):
            g('s_add_u32 m0, s%d, %d', sT4, L_WO + i * 1024)
            if i: g('s_add_u32 s%d, s%d, 16384', sT3, sT3)
            g.vmem('buffer_load_dwordx4 v155, %s, s%d offen%s lds', srd, sT3, ' nt')
    def wo_frags():
        g('v_lshrrev_b32 v155, 4, v1\nv_bfe_u32 v156, v1, 2, 2\nv_lshl_add_u32 v155, v155, 3, v156\nv_lshlrev_b32 v155, 6, v155\nv_and_b32 v156, 3, v1\nv_lshl_add_u32 v155, v156, 4, v155')
        g('s_lshl_b32 vcc_lo, s%d, 13\ns_add_u32 vcc_lo, vcc_lo, %d\nv_add_u32 v155, vcc_lo, v155', sW, L_WO)
        g.trfrags(FB, 155, 2048, 256)
    kfl = flags_load(g, 157, 158)
    if not P.wo_late: wo_dma()
    else:
        g('s_lshl_b32 s%d, s%d, 2\ns_add_u32 s%d, s%d, s%d\ns_lshl_b32 s%d, s%d, 13\nv_lshlrev_b32 v159, 7, v1', sT1, sTF, sT1, sT1, sW, sT1, sT1)
        g.vmem('buffer_load_dword v0, v159, %s, s%d offen nt', g.srd(G2, pWO), sT1)
    g.wait_vm(kc + 3)
    for ks in range(4): g.silu8(SF + 4 * ks, PB + 4 * ks, ST_)
    g.wait_vm(kfl)
    flags_check(g, 157, 158)
    g('s_barrier')
    g('v_add_u32 v%d, %d, v%d', t0, L_WUV, vTR)
    g.trfrags(FA, t0, 8192, 1024)
    lp = g.label('F')
    g('s_cmp_gt_u32 s%d, 1\ns_cbranch_scc1 %s', sW, lp)
    g('v_lshrrev_b32 v%d, 4, v1\nv_bfe_u32 v%d, v1, 2, 2\nv_lshl_add_u32 v%d, v%d, 3, v%d\nv_lshlrev_b32 v%d, 7, v%d\nv_lshl_add_u32 v%d, v%d, 4, v%d', t0, t2, t0, t0, t2, t0, t0, t0, t3, t0)
    g('s_lshl_b32 s3, s%d, 6\ns_add_u32 s3, s3, %d\nv_add_u32 v%d, s3, v%d', sW, L_WM, t0, t0)
    g.trfrags(MF, t0, 4096, 512)
    g('s_waitcnt lgkmcnt(0)')
    g.gemv8(D, MF, SF)
    g('s_lshl_b32 s3, s%d, 14\ns_lshl_b32 s%d, s%d, 7\ns_add_u32 s3, s3, s%d\ns_lshl_b32 s%d, s%d, 6\ns_add_u32 s3, s3, s%d\ns_add_u32 s3, s3, 0x%x', sQ, sT1, sH, sT1, sT1, sW, sT1, MB)
    g('v_lshrrev_b32 v%d, 4, v1\nv_lshlrev_b32 v%d, 4, v%d\nv_lshl_add_u32 v%d, v%d, 12, v%d', t0, t0, t0, t0, t3, t0)
    g.pack8(PK, D)
    g.execm(0x000f000f, 0x000f000f)
    g('buffer_store_dwordx4 v[%d:%d], v%d, %s, s3 offen sc1', PK, PK + 3, t0, q(WS))
    g.execm(0xffffffff, 0xffffffff)
    g('%s:', lp)
    if not P.wo_late:
        g('s_waitcnt vmcnt(0)')
        wo_frags()
    g.stamp('tailw')
    WL, AC, vCK, vSM, vIL = 128, 144, 152, 153, 154
    lp = g.label('F')
    g('s_cmp_lg_u32 s%d, 0\ns_cbranch_scc1 %s', sW, lp)
    g('v_lshlrev_b32 v%d, 8, v1', t0)
    g('s_lshl_b32 s3, s%d, 3\ns_add_u32 s3, s3, 0x%x\ns_add_u32 s%d, s3, 16384', sH, ST, sT1)
    def body():
        g('buffer_load_dwordx2 v[%d:%d], v%d, %s, s3 offen sc1', PB, PB + 1, t0, q(WS))
        g('buffer_load_dwordx2 v[%d:%d], v%d, %s, s%d offen sc1', PB + 2, PB + 3, t0, q(WS), sT1)
        g('s_waitcnt vmcnt(0)')
        g('v_max_u32 v%d, v%d, v%d\nv_cmp_eq_u32 vcc, -1, v%d', t1, PB + 1, PB + 3, t1)
    g.poll(body, P.slp_st)
    g.stamp('st_in')
    g('v_mov_b32 v%d, v%d\nv_mov_b32 v%d, v%d', PB + 4, PB, PB + 5, PB + 2)
    g.allreduce('v_max_f32', [PB + 4, PB + 5], PB + 6, p32=False)
    g('v_sub_f32 v%d, v%d, v%d\nv_sub_f32 v%d, v%d, v%d', PB, PB, PB + 4, PB + 2, PB + 2, PB + 5)
    g('v_exp_f32 v%d, v%d\nv_exp_f32 v%d, v%d', PB, PB, PB + 2, PB + 2)
    g('v_cvt_pk_bf16_f32 v%d, v%d, 0\nv_cvt_pk_bf16_f32 v%d, v%d, 0', PB, PB, PB + 2, PB + 2)
    g('v_lshlrev_b32 v%d, 2, v1\nv_add_u32 v%d, %d, v%d', t1, t1, L_W, t1)
    g('ds_write_b32 v%d, v%d\nds_write_b32 v%d, v%d offset:256', t1, PB, t1, PB + 2)
    g('v_lshlrev_b32 v%d, 16, v%d\nv_lshlrev_b32 v%d, 16, v%d', PB + 4, PB, PB + 5, PB + 2)
    g('v_mul_f32 v%d, v%d, v%d\nv_mul_f32 v%d, v%d, v%d', PB + 4, PB + 4, PB + 1, PB + 5, PB + 5, PB + 3)
    g.allreduce('v_add_f32', [PB + 4, PB + 5], PB + 6, p32=False)
    g('v_rcp_f32 v%d, v%d\nv_rcp_f32 v%d, v%d', PB + 4, PB + 4, PB + 5, PB + 5)
    g('v_lshrrev_b32 v%d, 5, v1\nv_lshlrev_b32 v%d, 2, v%d\nv_add_u32 v%d, %d, v%d', t1, t1, t1, t1, L_W + 512, t1)
    g('ds_write_b32 v%d, v%d\nds_write_b32 v%d, v%d offset:8', t1, PB + 4, t1, PB + 5)
    g('%s:', lp)
    g('s_waitcnt lgkmcnt(0)\ns_barrier')
    g.stamp('stat')
    if P.pre_ob: g('s_sleep %d', P.pre_ob)
    g('s_lshl_b32 s%d, s%d, 15\ns_lshl_b32 s%d, s%d, 13\ns_add_u32 s%d, s%d, s%d\ns_add_u32 s%d, s%d, 0x%x\ns_add_u32 s%d, s%d, 4096', sA0, sTF, sA1, sW, sA0, sA0, sA1, sA0, sA0, OB, sA1, sA0)
    g('s_lshl_b32 s%d, s%d, 12', sA2, sW)
    g('s_lshl_b32 vcc_lo, s%d, 7\ns_add_u32 s%d, s%d, vcc_lo\ns_lshl_b32 vcc_lo, s%d, 2\ns_add_u32 s%d, s%d, vcc_lo\ns_add_u32 s%d, s%d, 0x%x', sQ, sA2, sA2, sH, sA2, sA2, sA2, sA2, CK)
    g('v_lshrrev_b32 v%d, 4, v1\nv_and_b32 v%d, 7, v1\nv_lshl_add_u32 v%d, v%d, 5, v%d\nv_lshlrev_b32 v%d, 9, v%d', t0, t1, t1, t0, t1, t1, t1)
    g('v_mov_b32 v%d, 0', vCK)
    g('s_lshl_b32 vcc_lo, s%d, 5\ns_add_u32 vcc_lo, vcc_lo, %d', sW, L_W)
    g('v_lshlrev_b32 v%d, 7, v%d\nv_add_u32 v%d, vcc_lo, v%d', t2, t0, t2, t2)
    g('v_lshlrev_b32 v%d, 2, v%d\nv_add_u32 v%d, %d, v%d', t3, t0, t3, L_W + 512, t3)
    def body(hook=None):
        k0 = g.vm
        for i in range(8):
            g.vmem('buffer_load_dwordx4 v[%d:%d], v2, %s, s%d offen offset:%d sc1', PB + 4 * i, PB + 4 * i + 3, q(WS), sA0 if i < 4 else sA1, (i & 3) * 1024)
        g.execm(0x00ff00ff, 0x00ff00ff)
        kk = g.vmem('buffer_load_dword v%d, v%d, %s, s%d offen sc1', vCK, t1, q(WS), sA2)
        g.execm(0xffffffff, 0xffffffff)
        if hook: hook(); g.stamp('obi')
        g('ds_read_b128 v[%d:%d], v%d\nds_read_b128 v[%d:%d], v%d offset:16\nds_read_b32 v%d, v%d', WL, WL + 3, t2, WL + 4, WL + 7, t2, vIL, t3)
        g('s_waitcnt lgkmcnt(0)')
        for i in range(8): g('v_lshlrev_b32 v%d, 16, v%d', WL + 8 + i, WL + i)
        for i in range(8):
            g.wait_vm(k0 + i)
            r = PB + 4 * i
            for d in range(4):
                c0 = '0' if i == 0 else 'v%d' % (AC + 2 * d); c1 = '0' if i == 0 else 'v%d' % (AC + 2 * d + 1)
                if i == 0:
                    g('v_dot2_f32_bf16 v%d, v%d, v%d, 0', AC + 2 * d, r + d, WL + i)
                    g('v_dot2_f32_bf16 v%d, v%d, v%d, 0', AC + 2 * d + 1, r + d, WL + 8 + i)
                else:
                    g('v_dot2c_f32_bf16 v%d, v%d, v%d', AC + 2 * d, r + d, WL + i)
                    g('v_dot2c_f32_bf16 v%d, v%d, v%d', AC + 2 * d + 1, r + d, WL + 8 + i)
            if i == 0: g('v_add3_u32 v%d, v%d, v%d, v%d\nv_add_u32 v%d, v%d, v%d', vSM, r, r + 1, r + 2, vSM, vSM, r + 3)
            else: g('v_add3_u32 v%d, v%d, v%d, v%d\nv_add3_u32 v%d, v%d, v%d, v%d', vSM, vSM, r, r + 1, vSM, vSM, r + 2, r + 3)
        g.wait_vm(kk)
        g('v_sub_u32 v%d, v%d, v%d', vSM, vSM, vCK)
        for k, st in enumerate((1, 2, 4, 8)):
            g('v_mul_f32 v%d, v%d, v%d\nv_mul_f32 v%d, v%d, v%d', AC + 2 * k, AC + 2 * k, vIL, AC + 2 * k + 1, AC + 2 * k + 1, vIL)
            g('v_add_u32_dpp v%d, v%d, v%d row_ror:%d row_mask:0xf bank_mask:0xf', vSM, vSM, vSM, st)
        for i in range(4): g('v_cvt_pk_bf16_f32 v%d, v%d, v%d', PK + i, AC + 2 * i, AC + 2 * i + 1)
        g('v_and_b32 v%d, 0x7fffffff, v%d\nv_and_b32 v%d, 0x80000000, v%d\nv_or_b32 v%d, v%d, v%d', vSM, vSM, vIL, vCK, vSM, vSM, vIL)
        g('v_cmp_ne_u32 vcc, 0, v%d', vSM)
    g('s_mul_i32 vcc_lo, s%d, %d\ns_add_u32 vcc_lo, vcc_lo, %d', sW, 4 * 272, L_X)
    g('v_mul_u32_u24 v14, 272, v%d\nv_and_b32 v15, 15, v1\nv_lshl_add_u32 v14, v15, 4, v14\nv_add_u32 v14, vcc_lo, v14', t0)
    g('v_mul_u32_u24 v15, 272, v15\nv_lshl_add_u32 v15, v%d, 4, v15\nv_add_u32 v15, %d, v15', t0, L_X)
    if P.wo_late:
        g.poll2(body, wo_dma, P.slp_ob)
    else:
        g.poll(body, P.slp_ob)
    g.stamp('ob')
    g('ds_write_b128 v14, v[%d:%d]', PK, PK + 3)
    g('s_lshl_b32 s%d, s%d, 12\ns_lshl_b32 s%d, s%d, 10\ns_add_u32 s%d, s%d, s%d\ns_lshl_b32 s%d, s%d, 8\ns_add_u32 s%d, s%d, s%d\ns_add_u32 s%d, s%d, 0x%x',
      sA0, sH, sA1, sW, sA0, sA0, sA1, sA1, sQ, sA0, sA0, sA1, sA0, sA0, CB)
    g('s_waitcnt lgkmcnt(0)\ns_barrier')
    for ks in range(4): g('ds_read_b128 v[%d:%d], v15 offset:%d', PB + 4 * ks, PB + 4 * ks + 3, ks * 64)
    g('s_lshl_b32 s%d, s%d, 2\ns_add_u32 s%d, s%d, s%d\ns_lshl_b32 s%d, s%d, 12\ns_add_u32 s%d, s%d, 0x%x', sA1, sX, sA1, sA1, sW, sA1, sA1, sA1, sA1, CB)
    g('s_waitcnt lgkmcnt(0)')
    g.stamp('lds')
    g.gemv8(D, FA, PB)
    g.psum(D); g.pack8(PK, D)
    g.execm(0x000f000f, 0x000f000f)
    g.store_lg(PK, vE, sA0)
    g.execm(0xffffffff, 0xffffffff)
    g.stamp('S4')
    def body():
        k0 = g.vm
        for ks in range(4):
            g.vmem('buffer_load_dwordx4 v[%d:%d], v%d, %s, s%d offen offset:%d sc1', PB + 4 * ks, PB + 4 * ks + 3, vF, q(WS), sA1, ks * 1024)
        chk_poison(g, PB, 4, k0, t0)
    g('v_and_b32 v%d, 3, v1\nv_lshrrev_b32 v%d, 4, v1\nv_lshl_add_u32 v%d, v%d, 2, v%d\nv_lshlrev_b32 v%d, 5, v%d\nv_add_u32 v%d, %d, v%d', t3, t1, t1, t3, t1, t1, t1, t1, L_Y, t1)
    g('s_lshl_b32 vcc_lo, s%d, 9\nv_add_u32 v%d, vcc_lo, v%d', sW, t2, t1)
    g('s_lshl_b32 s%d, s%d, 12\ns_lshl_b32 s%d, s%d, 6\ns_add_u32 s%d, s%d, s%d\ns_add_u32 s%d, s%d, 0x%x', sA0, sX, sA2, sJ, sA0, sA0, sA2, sA0, sA0, XB)
    g('v_lshrrev_b32 v14, 4, v1\nv_lshlrev_b32 v14, 4, v14\nv_lshl_add_u32 v14, v%d, 10, v14', t3)
    if P.wo_late:
        g('s_waitcnt vmcnt(1)')
        wo_frags()
    g.stamp('cb5')
    g.poll(body, P.slp_c)
    if P.can_x == 1: canary_set(g, CANX, 156)
    g('s_waitcnt lgkmcnt(0)')
    g.stamp('cb')
    g.gemv8(D, FB, PB)
    g.psum(D)
    g.stamp('S5m')
    g.execm(0x000f000f, 0x000f000f)
    g('ds_write_b128 v%d, v[%d:%d]\nds_write_b128 v%d, v[%d:%d] offset:16', t2, D, D + 3, t2, D + 4, D + 7)
    g('s_waitcnt lgkmcnt(0)\ns_barrier')
    lp = g.label('F')
    g('s_cmp_lg_u32 s%d, 0\ns_cbranch_scc1 %s', sW, lp)
    for w in range(1, 4):
        g('ds_read_b128 v[%d:%d], v%d offset:%d\nds_read_b128 v[%d:%d], v%d offset:%d', PB + 8 * w, PB + 8 * w + 3, t1, w * 512, PB + 8 * w + 4, PB + 8 * w + 7, t1, w * 512 + 16)
    for w in range(1, 4):
        g('s_waitcnt lgkmcnt(%d)', 6 - 2 * w)
        for i in range(0, 8, 2): g('v_pk_add_f32 v[%d:%d], v[%d:%d], v[%d:%d]', D + i, D + i + 1, D + i, D + i + 1, PB + 8 * w + i, PB + 8 * w + i + 1)
    g.pack8(PK, D)
    g('buffer_store_dwordx4 v[%d:%d], v14, %s, s%d offen sc1', PK, PK + 3, q(WS), sA0)
    if P.can_x == 2: canary_set(g, CANX, 156)
    g('%s:', lp)
    g.stamp('S5')
    g('L_Fend:')
    g.stamp('end')
    epilogue(g)
    g('L_FH:')
    if P.dbg == 1: g('s_endpgm')
    g('s_getreg_b32 s%d, hwreg(HW_REG_XCC_ID, 0, 4)', sLOC)
    for i in range(4): g('v_mov_b32 v%d, -1', PK + i)
    g('v_lshlrev_b32 v%d, 15, v%d\nv_lshl_add_u32 v%d, v%d, 4, v%d', t2, t0, t2, t1, t2)
    get_tag(g)
    g('s_lshl_b32 s%d, s%d, 7\ns_add_u32 s%d, s%d, 0x%x', sT3, sTF, sT3, sT3, FL)
    g('v_mov_b32 v14, s%d\nv_mov_b32 v15, s%d\ns_mov_b64 exec, 1', sT, sLOC)
    g('buffer_store_dwordx2 v[14:15], v2, %s, s%d offen sc1', q(WS), sT3)
    g('s_mov_b64 exec, -1')
    if P.hdel: g('s_waitcnt vmcnt(0)')
    g('s_lshl_b32 s3, s%d, 8\ns_add_u32 s3, s3, 0x%x', sTF, QP)
    g('buffer_store_dwordx4 v[%d:%d], v%d, %s, s3 offen sc1', PK, PK + 3, t2, q(WS))
    g('s_mul_i32 s3, s%d, 6144\ns_add_u32 s3, s3, 0x%x', sTF, P1)
    for i in range(6):
        if i == 4: g('s_add_u32 s3, s3, 4096')
        g('buffer_store_dwordx4 v[%d:%d], v2, %s, s3 offen offset:%d sc1', PK, PK + 3, q(WS), (i % 4) * 1024)
    g('s_barrier')
    g('s_waitcnt vmcnt(0)\ns_mov_b64 exec, 1')
    g('s_add_u32 s%d, s%d, 0x%x', sT3, sT3, FL2 - FL)
    g('buffer_store_dword v14, v2, %s, s%d offen sc1', q(WS), sT3)
    g('s_barrier')
    g('s_endpgm')
def role_A(g):
    t0, t1, t2, t3, t4, t5 = 10, 11, 12, 13, 14, 15
    LC = 32768
    g.vm = 0; g.role = 'A'; g.ns = 1
    g('s_cmp_eq_u32 s%d, 4\ns_cbranch_scc1 L_end', sW)
    g('s_sub_u32 s%d, s%d, 16', sJ, sJ)
    g('s_lshl_b32 s%d, s%d, 4\ns_add_u32 s%d, s%d, s%d', sA, sX, sA, sA, sJ)
    sKO, sKM = sB, sS
    def ckv_setup():
        g('s_lshl_b32 s%d, s%d, 17\ns_lshl_b32 s%d, s%d, 15\ns_add_u32 s%d, s%d, s%d\ns_add_u32 s%d, s%d, %d', sKO, sA, sKM, sW, sKO, sKO, sKM, sKM, sKM, LC)
        g.srd(G0, pCKV)
    def ckv(i):
        f = ((i & 3) << 2) | ((i >> 2) & 3)
        if i % 4 == 0:
            g('s_add_u32 m0, s%d, %d', sKM, i * 1024)
            if i: g('s_add_u32 s%d, s%d, 4096', sKO, sKO)
        if f: g('v_xor_b32 v3, %d, v2', f << 4)
        return g.vmem('buffer_load_dwordx4 v%d, %s, s%d offen offset:%d nt lds', 3 if f else 2, q(G0), sKO, (i % 4) * 1024)
    lno = g.label('A'); ljoin = g.label('A')
    g('s_cmp_ge_u32 s%d, 4\ns_cbranch_scc1 %s', sX, lno)
    g('v_and_b32 v%d, 3, v1\nv_lshrrev_b32 v%d, 4, v1\nv_lshlrev_b32 v%d, 4, v%d\nv_lshl_add_u32 v%d, v%d, 10, v%d', t3, t1, t2, t1, t2, t3, t2)
    g('s_lshl_b32 s3, s%d, 2\ns_add_u32 s3, s3, s%d\ns_lshl_b32 s%d, s3, 6\ns_lshl_b32 s%d, s%d, 10', sX, sW, sT1, sT3, sW)
    g('v_lshrrev_b32 v%d, 2, v1\nv_mul_u32_u24 v%d, 6144, v%d\nv_lshl_add_u32 v%d, v%d, 4, v%d', t0, t0, t0, t0, t3, t0)
    g('s_mul_i32 s3, s3, %d\ns_lshl_b32 s%d, s%d, 6\ns_add_u32 s3, s3, s%d', 32 * 6144, sT4, sJ, sT4)
    sTB = sT2
    g('s_cmp_eq_u32 s%d, 3\ns_cselect_b32 s%d, 2, 1\ns_add_u32 s%d, s%d, s%d\ns_lshl_b32 s%d, s%d, 12', sW, sTB, sTB, sW, sTB, sTB, sTB)
    g('s_waitcnt lgkmcnt(0)')
    g.stamp('ka')
    kc = g.vmem('buffer_load_dwordx4 v[32:35], v%d, %s, s%d offen', t2, g.srd(G0, pC), sT1)
    kx = g.vmem('buffer_load_dwordx4 v[36:39], v2, %s, s%d offen', g.srd(G1, pX), sT3)
    srd = g.srd(G2, pWM)
    for i in range(2):
        for mu in range(2):
            g('s_add_u32 m0, s%d, %d', sTB, mu * 1024 + i * 1024)
            if i == 1 and mu == 0: g('s_add_u32 s3, s3, %d', 16 * 6144)
            kw = g.vmem('buffer_load_dwordx4 v%d, %s, s3 offen offset:%d nt lds', t0, srd, mu * 1024)
    g('v_bfe_u32 v%d, v1, 2, 2\nv_bfe_u32 v%d, v1, 4, 1', t4, t5)
    g('v_lshlrev_b32 v%d, 10, v%d\nv_lshl_add_u32 v%d, v%d, 4, v%d\nv_lshl_add_u32 v%d, v%d, 3, v%d', t2, t4, t2, t3, t2, t2, t5, t2)
    kx2 = g.vmem('buffer_load_dwordx2 v[40:41], v%d, %s, s%d offen', t2, q(G1), sT4)
    g('s_load_dword s%d, s[%d:%d], 0', sT, WS, WS + 1)
    ckv_setup()
    n0 = 0
    for i in range(P.s0x[0]): ckv(n0); n0 += 1
    g.stamp('iss')
    g.wait_vm(kc)
    g.stamp('c_in')
    g.silu8(44, 32, 48)
    g.stamp('silu')
    g.wait_vm(kx)
    g.unpack8(48, 36)
    g('v_mul_f32 v56, v48, v48\nv_add_f32 v57, v48, v49\nv_fmac_f32 v56, v49, v49')
    for i in range(2, 8): g('v_add_f32 v57, v57, v%d\nv_fmac_f32 v56, v%d, v%d', 48 + i, 48 + i, 48 + i)
    g.allreduce('v_add_f32', [56, 57], 58)
    g('v_mul_f32 v60, 0x%x, v57\nv_mul_f32 v56, 0x%x, v56\nv_fma_f32 v56, -v60, v60, v56\nv_max_f32 v56, 0, v56\nv_add_f32 v56, 0x%x, v56\nv_rsq_f32 v61, v56', f2u(1 / 512), f2u(1 / 512), f2u(1e-5))
    g('s_lshl_b32 s3, s%d, 3\nv_mov_b32 v58, s3', sW)
    g('v_lshl_add_u32 v%d, v%d, 3, v%d\nv_lshlrev_b32 v%d, 6, v%d\nv_lshl_add_u32 v%d, v%d, 4, v%d\nv_add_u32 v%d, s%d, v%d', t0, t1, t4, t0, t0, t0, t3, t0, t0, sTB, t0)
    g('s_mov_b64 exec, 1\nds_write_b64 v58, v[60:61]\ns_mov_b64 exec, -1')
    for i in range(P.s0x[1]): ckv(n0); n0 += 1
    g.stamp('x_in')
    g.wait_vm(kx2)
    g.stamp('wm_in')
    for mu in range(2):
        for t in range(2):
            for u in range(2):
                r = 64 + 8 * mu + 4 * t + 2 * u
                g('ds_read_b64_tr_b16 v[%d:%d], v%d offset:%d', r, r + 1, t0, mu * 2048 + u * 256 + 8 * t)
    g('v_lshl_add_u32 v%d, v%d, 2, v%d\nv_lshlrev_b32 v%d, 5, v%d\ns_lshl_b32 s3, s%d, 10\ns_add_u32 s3, s3, 16384\nv_add_u32 v%d, s3, v%d', t2, t3, t1, t2, t2, sW, t2, t2)
    g('s_waitcnt lgkmcnt(0)')
    for k in range(4): g('v_mfma_f32_16x16x32_bf16 v[%d:%d], v[%d:%d], v[44:47], 0', 80 + 4 * k, 83 + 4 * k, 64 + 4 * k, 67 + 4 * k)
    g('v_lshl_add_u32 v%d, v%d, 2, v%d\nv_lshlrev_b32 v%d, 5, v%d\nv_lshl_add_u32 v%d, v%d, 4, v%d\nv_add_u32 v%d, 16384, v%d', t0, t4, t3, t0, t0, t0, t5, t0, t0, t0)
    g('v_lshlrev_b32 v%d, 3, v%d', t4, t4)
    g.execm(0x000f000f, 0x000f000f)
    for k in range(4): g('ds_write_b128 v%d, v[%d:%d] offset:%d', t2, 80 + 4 * k, 83 + 4 * k, (k >> 1) * 512 + (k & 1) * 16)
    g.execm(0xffffffff, 0xffffffff)
    for i in range(P.s0x[2]): ckv(n0); n0 += 1
    g.stamp('mfma')
    get_tag(g)
    g('s_barrier')
    g.stamp('bar0')
    lp = g.label('A')
    g('s_cmp_lg_u32 s%d, 0\ns_cbranch_scc1 %s', sW, lp)
    g('ds_read_b64 v[60:61], v%d', t4)
    for w in range(4):
        for mu in range(2): g('ds_read_b128 v[%d:%d], v%d offset:%d', 64 + 8 * w + 4 * mu, 67 + 8 * w + 4 * mu, t0, w * 1024 + mu * 512)
    g('v_lshlrev_b32 v48, 16, v40\nv_and_b32 v49, 0xffff0000, v40\nv_lshlrev_b32 v50, 16, v41\nv_and_b32 v51, 0xffff0000, v41')
    g('s_cmp_eq_u32 s%d, 0\ns_cselect_b32 s3, 1.0, 0', sX)
    g('s_waitcnt lgkmcnt(6)')
    for i in range(4): g('v_sub_f32 v%d, v%d, v60', 48 + i, 48 + i)
    for i in range(4): g('v_mul_f32 v%d, v%d, v61', 48 + i, 48 + i)
    for i in range(4): g('v_add_f32 v%d, s3, v%d', 68 + i, 68 + i)
    for w in range(1, 4):
        g('s_waitcnt lgkmcnt(%d)', 6 - 2 * w)
        for i in range(0, 8, 2): g('v_pk_add_f32 v[%d:%d], v[%d:%d], v[%d:%d]', 64 + i, 65 + i, 64 + i, 65 + i, 64 + 8 * w + i, 65 + 8 * w + i)
    for i in range(4): g('v_fmac_f32 v%d, v%d, v%d', 64 + i, 48 + i, 68 + i)
    g('v_cmp_eq_u32 vcc, 0, v%d\nv_mov_b32 v58, s%d', t5, sT)
    g('v_cvt_pk_bf16_f32 v52, v64, v65\nv_cvt_pk_bf16_f32 v55, v66, v67')
    g('v_cndmask_b32 v53, v55, v58, vcc\nv_cndmask_b32 v54, v58, v52, vcc')
    g('s_lshl_b32 s3, s%d, 11\ns_lshl_b32 s%d, s%d, 9\ns_add_u32 s3, s3, s%d\ns_add_u32 s3, s3, 0x%x\ns_mov_b32 exec_hi, 0', sJ, sT1, sX, sT1, HB)
    g('buffer_store_dwordx4 v[52:55], v2, %s, s3 offen sc1', q(WS))
    g('s_mov_b64 exec, -1')
    g('%s:', lp)
    g.stamp('S0')
    g('s_branch %s', ljoin)
    g('%s:', lno)
    kawait(g)
    if P.fdel: g('s_waitcnt lgkmcnt(0)')
    ckv_setup()
    for i in range(n0):
        cap = P.cap1 if i < P.n1 else P.cap2
        if i >= cap: g('s_waitcnt vmcnt(%d)', cap - 1)
        ckv(i)
    get_tag(g)
    g('%s:', ljoin)
    VA, VB, RA, RB_, SA, PP = 16, 24, 32, 64, 96, 112
    kfl = None
    for i in range(n0, 32):
        cap = P.cap1 if i < P.n1 else P.cap2
        if i >= cap: g('s_waitcnt vmcnt(%d)', cap - 1)
        ckv(i)
        if i in (12, 20): g.stamp('kv8' if i == 12 else 'kv16')
        if i == 12:
            g('v_and_b32 v%d, 31, v1\nv_lshrrev_b32 v%d, 5, v1', t0, t1)
            g('v_and_b32 v%d, 3, v1\nv_bfe_u32 v%d, v1, 2, 2\nv_lshl_or_b32 v%d, v%d, 2, v%d\nv_xor_b32 v%d, v%d, v%d', t2, t3, t2, t2, t3, t2, t2, t1)
            g('v_lshlrev_b32 v%d, 4, v%d', t2, t2)
            g('v_lshl_add_u32 v%d, v%d, 10, v%d\nv_add_u32 v%d, s%d, v%d\nv_lshl_add_u32 v%d, v%d, 9, v%d', VA, t0, t2, VA, sKM, VA, VB, t0, t2)
            for t in range(1, 8): g('v_xor_b32 v%d, %d, v%d\nv_xor_b32 v%d, %d, v%d', VA + t, t << 5, VA, VB + t, t << 5, VB)
        if i == P.fl_at: kfl = flags_load(g, 4, 5)
    g.stamp('kvis')
    g.wait_vm(kfl)
    if P.dbg not in (1, 2, 3): flags_check(g, 4, 5)
    g('s_and_b32 s3, s%d, 1\ns_lshl_b32 s3, s3, 1\nv_xor_b32 v%d, s3, v%d\nv_lshlrev_b32 v%d, 4, v%d\nv_lshl_add_u32 v%d, v%d, 14, v%d', sW, t2, t0, t2, t2, t2, t1, t2)
    g('s_lshl_b32 s3, s%d, 12\nv_add_u32 v%d, s3, v%d', sW, t2, t2)
    g('s_lshr_b32 s3, s%d, 5\ns_lshl_b32 s3, s3, 15\ns_lshl_b32 s%d, s%d, 13\ns_add_u32 s3, s3, s%d\ns_add_u32 s3, s3, 0x%x\ns_add_u32 s%d, s3, 4096', sA, sT1, sW, sT1, QP, sT1)
    g('s_waitcnt vmcnt(%d)', P.qx)
    g.stamp('kvw')
    if P.dbg in (1, 2, 3, 4): g('s_branch L_Aend')
    def qld(i): return g.vmem('buffer_load_dwordx4 v[%d:%d], v2, %s, s%d offen offset:%d sc1', RA + 4 * i, RA + 4 * i + 3, q(WS), 3 if i < 4 else sT1, (i & 3) * 1024)
    def qwr(i):
        c = (((i & 3) << 2) | (i >> 2)) << 4
        if c: g('v_xor_b32 v%d, %d, v%d', t3 + (i & 1), c, t2)
        g('ds_write_b128 v%d, v[%d:%d] offset:%d', (t3 + (i & 1)) if c else t2, RA + 4 * i, RA + 4 * i + 3, i * 512)
    def qmask(i):
        g('v_cmp_eq_u32 vcc, -1, v%d\ns_cmp_lg_u64 vcc, 0\ns_addc_u32 s%d, s%d, s%d', RA + 4 * i + 3, sT3, sT3, sT3)
    k0 = g.vm
    for i in range(8): qld(i)
    g('s_mov_b32 s%d, 0', sT3)
    for i in range(8):
        g.wait_vm(k0 + i)
        qwr(i); qmask(i)
    lq = g.label('Q'); lr = g.label('R')
    g('s_cmp_eq_u32 s%d, 0\ns_cbranch_scc1 %s', sT3, lq)
    g('%s:', lr)
    g('s_sleep %d', P.slp_qp)
    for i in range(8):
        ls = g.label('S')
        g('s_bitcmp1_b32 s%d, %d\ns_cbranch_scc0 %s', sT3, 7 - i, ls)
        qld(i)
        g('%s:', ls)
    g('s_waitcnt vmcnt(0)\ns_mov_b32 s%d, 0', sT3)
    for i in range(8): qmask(i)
    g('s_add_u32 s%d, s%d, 1\ns_cmp_gt_u32 s%d, 40000\ns_cselect_b32 s%d, 0, s%d', sSP, sSP, sSP, sT3, sT3)
    g('s_cmp_lg_u32 s%d, 0\ns_cbranch_scc1 %s', sT3, lr)
    for i in range(8): qwr(i)
    g('%s:', lq)
    g.stamp('qp')
    def gu_touch():
        g('v_lshrrev_b32 v4, 2, v1\nv_mul_u32_u24 v4, 3584, v4\nv_and_b32 v5, 3, v1\nv_lshl_add_u32 v4, v5, 7, v4')
        g('s_lshl_b32 s3, s%d, 1\ns_lshr_b32 s%d, s%d, 1\ns_add_u32 s3, s3, s%d\ns_mul_i32 s3, s3, %d', sJ, sT1, sW, sT1, 16 * 3584)
        g('s_mul_i32 s%d, s%d, 448\ns_and_b32 s%d, s%d, 0xffffff80\ns_add_u32 s3, s3, s%d', sT1, sX, sT1, sT1, sT1)
        g('s_bitcmp1_b32 s%d, 0\ns_cselect_b64 s[%d:%d], s[%d:%d], s[%d:%d]', sW, G1, G1 + 1, pWU, pWU + 1, pWG, pWG + 1)
        g.vmem('buffer_load_dword v0, v4, %s, s3 offen nt', q(G1))
    if P.gu_pf == 1: gu_touch()
    g('s_waitcnt lgkmcnt(0)\ns_barrier')
    g.stamp('qbar')
    PR, PKO, RBK, OA = 208, 192, 240, 128
    vP, vS, vR, vO, vX = 4, 8, 9, 3, 120
    g.lg = 0
    idx = {}
    def rd(ks):
        s = ks % 8; t = ks & 7
        g.ds('ds_read_b128 v[%d:%d], v%d offset:%d', RA + 4 * s, RA + 4 * s + 3, VA + t, (ks >> 3) * 256)
        idx[ks] = g.ds('ds_read_b128 v[%d:%d], v%d offset:%d', RB_ + 4 * s, RB_ + 4 * s + 3, VB + t, (ks >> 4) * 16384 + ((ks >> 3) & 1) * 256)
    for ks in range(7): rd(ks)
    fill = []
    fill += ['v_bfe_u32 v%d, v1, 2, 2' % t3, 'v_and_b32 v%d, 1, v1' % t4, 'v_bfe_u32 v%d, v1, 4, 1' % t5,
             'v_lshl_or_b32 v%d, v%d, 1, v%d' % (t4, t4, t5), 'v_xor_b32 v%d, v%d, v%d' % (t4, t4, t1),
             'v_lshl_or_b32 v%d, v%d, 2, v%d' % (t4, t3, t4), 'v_lshlrev_b32 v%d, 4, v%d' % (t4, t4),
             'v_lshl_add_u32 v%d, v%d, 2, v%d' % (t3, t1, t3), 'v_lshl_add_u32 v%d, v%d, 10, v%d' % (t4, t3, t4),
             'v_bfe_u32 v%d, v1, 1, 1' % t5, 'v_lshl_add_u32 v%d, v%d, 3, v%d' % (t4, t5, t4),
             's_lshl_b32 s3, s%d, 8' % sW, 's_add_u32 s3, s3, %d' % LC, 'v_add_u32 v%d, s3, v%d' % (vX, t4),
             'v_mov_b32 v%d, v%d' % (vP, vX), 'v_xor_b32 v%d, 32, v%d' % (vP + 1, vX), 'v_add_u32 v%d, 8192, v%d' % (vP + 1, vP + 1),
             'v_add_u32 v%d, 0x10000, v%d' % (vP + 2, vP), 'v_add_u32 v%d, 0x10000, v%d' % (vP + 3, vP + 1),
             'v_lshlrev_b32 v%d, 5, v%d' % (t3, t0), 's_lshl_b32 s3, s%d, 3' % sW, 'v_add_u32 v%d, s3, v%d' % (t4, t3),
             'v_and_b32 v%d, 7, v%d' % (t5, t0), 'v_lshlrev_b32 v%d, 1, v%d' % (vS, t1), 'v_xor_b32 v%d, v%d, v%d' % (vS, vS, t5),
             'v_lshlrev_b32 v%d, 4, v%d' % (vS, vS), 'v_lshl_add_u32 v%d, v%d, 7, v%d' % (vS, t0, vS),
             's_lshl_b32 s3, s%d, 12' % sW, 's_add_u32 s3, s3, 16384', 'v_add_u32 v%d, s3, v%d' % (vS, vS),
             'v_lshrrev_b32 v%d, 3, v1' % t5, 'v_and_b32 v%d, 7, v1' % vO, 'v_xor_b32 v%d, v%d, v%d' % (vR, vO, t5),
             'v_lshlrev_b32 v%d, 4, v%d' % (vR, vR), 'v_lshl_add_u32 v%d, v%d, 7, v%d' % (vR, t5, vR), 'v_add_u32 v%d, s3, v%d' % (vR, vR),
             'v_lshlrev_b32 v%d, 4, v%d' % (vO, vO), 'v_lshl_add_u32 v%d, v%d, 17, v%d' % (vO, t5, vO),
             's_lshl_b32 s3, s%d, 11' % sW, 'v_add_u32 v%d, s3, v2' % t5,
             's_and_b32 s%d, s%d, 31' % (sKO, sA), 's_lshl_b32 s%d, s%d, 10' % (sKO, sKO), 's_lshr_b32 s3, s%d, 5' % sA, 's_lshl_b32 s3, s3, 8',
             's_add_u32 s%d, s%d, s3' % (sKO, sKO), 's_lshl_b32 s3, s%d, 15' % sW, 's_add_u32 s%d, s%d, s3' % (sKO, sKO), 's_add_u32 s%d, s%d, 0x%x' % (sKO, sKO, OB),
             's_mov_b32 s%d, 0x3f803f80' % sT1]
    pidx = {}
    def prd(n):
        tau, kap = n >> 3, n & 7; s = n % 8
        for u in range(2):
            pidx[n] = g.ds('ds_read_b64_tr_b16 v[%d:%d], v%d offset:%d', PR + 4 * s + 2 * u, PR + 4 * s + 2 * u + 1, vP + u + (2 if kap >= 4 else 0), (kap & 3) * 16384)
    for ks in range(32):
        g.wait_ds(idx[ks])
        if ks == 16: g('s_barrier')
        g('v_mfma_f32_32x32x16_bf16 v[%d:%d], v[%d:%d], v[%d:%d], %s', SA, SA + 15, RA + 4 * (ks % 8), RA + 4 * (ks % 8) + 3, RB_ + 4 * (ks % 8), RB_ + 4 * (ks % 8) + 3,
          '0' if ks == 0 else 'v[%d:%d]' % (SA, SA + 15))
        if ks + 7 < 32: rd(ks + 7)
        else: prd(ks + 7 - 32)
        for _ in range(3):
            if fill: g(fill.pop(0))
    assert not fill
    g.stamp('scor')
    vM, vL, DW = 122, 123, 100
    g('v_max3_f32 v%d, v%d, v%d, v%d\nv_max3_f32 v121, v%d, v%d, v%d', vM, SA, SA + 1, SA + 2, SA + 3, SA + 4, SA + 5)
    for i in range(6, 14, 4): g('v_max3_f32 v%d, v%d, v%d, v%d\nv_max3_f32 v121, v121, v%d, v%d', vM, vM, SA + i, SA + i + 1, SA + i + 2, SA + i + 3)
    g('v_max3_f32 v%d, v%d, v%d, v%d\nv_max_f32 v%d, v%d, v121', vM, vM, SA + 14, SA + 15, vM, vM)
    g.allreduce('v_max_f32', [vM], 121, steps=(), p16=False)
    g('v_ceil_f32 v%d, v%d', vM, vM)
    for i in range(0, 16, 2): g('v_pk_add_f32 v[%d:%d], v[%d:%d], v[%d:%d] op_sel_hi:[1,0] neg_lo:[0,1] neg_hi:[0,1]', SA + i, SA + i + 1, SA + i, SA + i + 1, vM, vM + 1)
    for h in range(2):
        for i in range(8): g('v_exp_f32 v%d, v%d', SA + 8 * h + i, SA + 8 * h + i)
        for i in range(4): g('v_cvt_pk_bf16_f32 v%d, v%d, v%d', PP + 4 * h + i, SA + 8 * h + 2 * i, SA + 8 * h + 2 * i + 1)
        g('ds_write_b128 v%d, v[%d:%d] offset:%d', t5, PP + 4 * h, PP + 4 * h + 3, 1024 * h)
    for i in range(4):
        if i == 0: g('v_dot2_f32_bf16 v%d, v%d, s%d, 0\nv_dot2_f32_bf16 v121, v%d, s%d, 0', vL, PP, sT1, PP + 4, sT1)
        else: g('v_dot2_f32_bf16 v%d, v%d, s%d, v%d\nv_dot2_f32_bf16 v121, v%d, s%d, v121', vL, PP + i, sT1, vL, PP + 4 + i, sT1)
    g('v_add_f32 v%d, v%d, v121', vL, vL)
    g.allreduce('v_add_f32', [vL], 121, steps=(), p16=False)
    g('ds_write_b64 v%d, v[%d:%d] offset:8192', t4, vM, vM + 1)
    g('s_waitcnt lgkmcnt(0)\ns_barrier')
    g.stamp('mx1')
    g.lg = 0
    for n in range(7): pidx[n] = -1
    kmx = [g.ds('ds_read_b128 v[%d:%d], v%d offset:%d', 104 + 4 * k, 107 + 4 * k, t3, 8192 + 16 * k) for k in range(2)]
    pf = [g.ds('ds_read_b128 v[%d:%d], v2 offset:%d', RA + 4 * k, RA + 4 * k + 3, k * 1024) for k in range(8)]
    g('s_mov_b32 s%d, 0x800080', sT3)
    g.wait_ds(kmx[1])
    g('v_max3_f32 v%d, v104, v106, v108\nv_max_f32 v%d, v%d, v110', vM, vM, vM)
    def dw(w): return ['v_sub_f32 v%d, v%d, v%d' % (96 + w, vM, 104 + 2 * w), 'v_cvt_u32_f32 v%d, v%d' % (96 + w, 96 + w),
                       'v_min_u32 v%d, 0xff, v%d' % (96 + w, 96 + w), 'v_mul_u32_u24 v%d, s%d, v%d' % (DW + w, sT3, 96 + w)]
    def psc(k): return [('wds', pf[k])] + ['v_pk_sub_u16 v%d, v%d, v%d clamp' % (RA + 4 * k + i, RA + 4 * k + i, DW + (k >> 1)) for i in range(4)]
    g.stamp('smax')
    vCS = 121
    def cvt_tile(tau):
        o = []
        for i in range(8): o.append('v_cvt_pk_bf16_f32 v%d, v%d, v%d' % (PKO + 8 * (tau & 1) + i, OA + 16 * tau + 2 * i, OA + 16 * tau + 2 * i + 1))
        r = PKO + 8 * (tau & 1)
        if tau == 0: o.append('v_add3_u32 v%d, v%d, v%d, v%d' % (vCS, r, r + 1, r + 2)); o.append('v_add_u32 v%d, v%d, v%d' % (vCS, vCS, r + 3))
        else: o.append('v_add3_u32 v%d, v%d, v%d, v%d' % (vCS, vCS, r, r + 1)); o.append('v_add3_u32 v%d, v%d, v%d, v%d' % (vCS, vCS, r + 2, r + 3))
        o.append('v_add3_u32 v%d, v%d, v%d, v%d' % (vCS, vCS, r + 4, r + 5)); o.append('v_add3_u32 v%d, v%d, v%d, v%d' % (vCS, vCS, r + 6, r + 7))
        for gam in range(2):
            c = (4 * (tau & 1) + gam) << 4
            if c: o.append('v_xor_b32 v%d, %d, v%d' % (t3 + gam, c, vS))
            o.append(('ds', 'ds_write_b128 v%d, v[%d:%d]' % ((t3 + gam) if c else vS, r + 4 * gam, r + 4 * gam + 3)))
        return o
    rb = {}
    def readback(sig):
        return [('dsr', i, sig) for i in range(4)]
    def stores(sig):
        return [('st', i, sig) for i in range(4)]
    def emit(x):
        if isinstance(x, str): g(x)
        elif x[0] == 'ds': g.ds(x[1])
        elif x[0] == 'dsr': rb[x[1]] = g.ds('ds_read_b128 v[%d:%d], v%d offset:%d', RBK + 4 * x[1], RBK + 4 * x[1] + 3, vR, x[1] * 1024)
        elif x[0] == 'st':
            g.wait_ds(rb[x[1]])
            g('s_add_u32 s3, s%d, %d', sKO, x[1] << 20)
            g.vmem('buffer_store_dwordx4 v[%d:%d], v%d, %s, s3 offen offset:%d sc1', RBK + 4 * x[1], RBK + 4 * x[1] + 3, vO, q(WS), x[2] * 128)
        elif x[0] == 'wds': g.wait_ds(x[1])
        elif x[0] == 'stat':
            lp = g.label('A')
            g('s_cmp_lg_u32 s%d, 0\ns_cbranch_scc1 %s', sW, lp)
            for w in range(4): g('v_sub_u32 v%d, 0, v%d', 96 + w, 96 + w)
            for w in range(4): g('v_ldexp_f32 v%d, v%d, v%d', 96 + w, 105 + 2 * w, 96 + w)
            g('v_add_f32 v96, v96, v97\nv_add_f32 v98, v98, v99\nv_add_f32 v%d, v96, v98\nv_min_u32 v%d, -2, v%d\nv_lshlrev_b32 v96, 3, v1', vL, vL, vL)
            g('s_lshl_b32 s3, s%d, 8\ns_add_u32 s3, s3, 0x%x\ns_mov_b32 exec_hi, 0', sA, ST)
            g('buffer_store_dwordx2 v[%d:%d], v96, %s, s3 offen sc1\ns_mov_b64 exec, -1', vM, vM + 1, q(WS))
            g('%s:', lp)
    sched = {n: [] for n in range(32)}
    for x in dw(0) + psc(0): emit(x)
    for k in range(1, 8): sched[k - 1] += psc(k) + (dw((k + 1) >> 1) if k & 1 and k < 7 else [])
    sched[7] += [('stat',)]
    def spread(items, n0, per):
        n = n0
        while items:
            sched[n] += items[:per]; items = items[per:]; n += 1
        return n
    spread(cvt_tile(0), 10, 3)
    n = spread(cvt_tile(1), 18, 4)
    n = spread(readback(0), n, 4)
    spread(stores(0), n + 1, 2)
    spread(cvt_tile(2), 27, 4)
    for n in range(32):
        tau, kap = n >> 3, n & 7
        need = pidx[n]
        if need >= 0: g.wait_ds(need)
        g('v_mfma_f32_32x32x16_bf16 v[%d:%d], v[%d:%d], v[%d:%d], %s', OA + 16 * tau, OA + 16 * tau + 15, PR + 4 * (n % 8), PR + 4 * (n % 8) + 3, RA + 4 * kap, RA + 4 * kap + 3,
          '0' if kap == 0 else 'v[%d:%d]' % (OA + 16 * tau, OA + 16 * tau + 15))
        m = n + 7
        if m < 32:
            if m & 7 == 0:
                g('v_xor_b32 v%d, %d, v%d\nv_xor_b32 v%d, %d, v%d\nv_add_u32 v%d, 8192, v%d', vP, (m >> 3) << 6, vX, vP + 1, ((m >> 3) << 6) | 32, vX, vP + 1, vP + 1)
            if m & 7 == 4 and m > 8:
                g('v_add_u32 v%d, 0x10000, v%d\nv_add_u32 v%d, 0x10000, v%d', vP + 2, vP, vP + 3, vP + 1)
            prd(m)
        for x in sched[n]: emit(x)
        if n in (8, 16, 24): g.stamp('pv%d' % n)
    g.stamp('pvm')
    for x in cvt_tile(3) + readback(1): emit(x)
    g.allreduce('v_add_u32', [vCS], 124, steps=(), p16=False)
    g('v_and_b32 v%d, 0x7fffffff, v%d\nv_lshlrev_b32 v126, 2, v1', vCS, vCS)
    for x in stores(1): emit(x)
    g('s_lshl_b32 s3, s%d, 9\ns_lshl_b32 s%d, s%d, 7\ns_add_u32 s3, s3, s%d\ns_add_u32 s3, s3, 0x%x\ns_mov_b32 exec_hi, 0', sA, sT1, sW, sT1, CK)
    g('buffer_store_dword v%d, v126, %s, s3 offen sc1\ns_mov_b64 exec, -1', vCS, q(WS))
    g.stamp('PV')
    g('s_cmp_ge_u32 s%d, 14\ns_cbranch_scc1 L_Aend', sJ)
    sFG = sS
    g('s_mul_i32 s%d, s%d, 14\ns_add_u32 s%d, s%d, s%d', sFG, sX, sFG, sFG, sJ)
    g('s_barrier')
    g.stamp('bar')
    L_G, L_D, L_H, L_R, L_X1, L_Z = 32768, 65536, 0, 8192, 16384, 24576
    GF, DF, MP, GA, C1, SB, X1, XP = 16, 48, 64, 112, 120, 128, 136, 64
    vFC, GBV, GR = 158, 98, 144
    g('s_lshl_b32 s%d, s%d, 10', sT1, sW)
    g.vmem('buffer_load_dwordx4 v[4:7], v2, %s, s%d offen', g.srd(G0, pX), sT1)
    def dma_a():
        g('v_lshrrev_b32 v%d, 1, v1\nv_mul_u32_u24 v%d, 3584, v%d\nv_and_b32 v%d, 1, v1\nv_lshl_add_u32 v%d, v%d, 4, v%d', t0, t0, t0, t1, t0, t1, t0)
        g('s_mul_i32 s%d, s%d, %d\ns_lshl_b32 s%d, s%d, 5\ns_add_u32 s%d, s%d, s%d', sT3, sW, 128 * 3584, sT1, sFG, sT3, sT3, sT1)
        g('s_lshl_b32 s%d, s%d, 13', sT1, sW)
        g.srd(G0, pWG); g.srd(G1, pWU)
        gu(0);
        if P.gu_first > 1: gu(1)
    def gu(i):
        for mu in range(2):
            g('s_add_u32 m0, s%d, %d', sT1, L_G + mu * 4096 + i * 1024)
            if i and mu == 0: g('s_add_u32 s%d, s%d, %d', sT3, sT3, 32 * 3584)
            g.vmem('buffer_load_dwordx4 v%d, %s, s%d offen%s lds', t0, q((G0, G1)[mu]), sT3, ' nt')
    def dma_d():
        g('v_lshrrev_b32 v%d, 4, v1\nv_and_b32 v%d, 15, v1\nv_lshlrev_b32 v%d, 2, v%d\nv_xor_b32 v%d, v%d, v%d\nv_lshlrev_b32 v%d, 4, v%d\nv_lshl_add_u32 v%d, v%d, 10, v%d',
          t1, t2, t3, t1, t3, t3, t2, t3, t3, t3, t1, t3)
        g('s_lshl_b32 s%d, s%d, 14\ns_lshl_b32 s%d, s%d, 8\ns_add_u32 s%d, s%d, s%d', sT3, sFG, sT1, sW, sT3, sT3, sT1)
        g('s_lshl_b32 s%d, s%d, 12', sT1, sW)
        srd = g.srd(G2, pWD)
        for i in range(4):
            g('s_add_u32 m0, s%d, %d', sT1, L_D + i * 1024)
            if i: g('s_add_u32 s%d, s%d, 4096', sT3, sT3)
            g.vmem('buffer_load_dwordx4 v%d, %s, s%d offen nt lds', t3, srd, sT3)
    g('s_lshl_b32 s3, s%d, 12\ns_add_u32 s3, s3, 0x%x', sW, MB)
    g('s_mov_b32 s%d, 0x3f80\ns_mov_b32 s%d, 1.0', sKO, sLOC)
    g('v_and_b32 v%d, 7, v1\nv_lshlrev_b32 v%d, 3, v%d\nv_lshrrev_b32 v%d, 5, v1\nv_lshl_add_u32 v%d, v%d, 2, v%d\nv_bfe_u32 v%d, v1, 4, 1\nv_lshl_add_u32 v%d, v%d, 1, v%d',
      vFC, vFC, vFC, t0, vFC, t0, vFC, t0, vFC, t0, vFC)
    g('v_lshlrev_b32 v%d, 1, v%d', t5, vFC)
    g('s_and_b32 s%d, s%d, 3\ns_lshl_b32 s%d, s%d, 12\ns_lshl_b32 s%d, s%d, 7\ns_add_u32 s%d, s%d, s%d\ns_add_u32 s%d, s%d, 0x%x', sT2, sJ, sT2, sT2, sT1, sX, sT2, sT2, sT1, sT2, sT2, MB + 3072)
    def body(hook=None):
        k0 = g.vm
        for p in range(4):
            g('s_add_u32 s%d, s3, %d', sT4, p * 16384)
            for v in range(3):
                r = MP + 12 * p + 4 * v
                g.vmem('buffer_load_dwordx4 v[%d:%d], v2, %s, s%d offen offset:%d sc1', r, r + 3, q(WS), sT4, v * 1024)
        for p in range(4):
            g('s_add_u32 s%d, s%d, %d', sT4, sT2, p * 16384)
            kk = g.vmem('buffer_load_dword v%d, v%d, %s, s%d offen sc1', GR + p, t5, q(WS), sT4)
        if hook: hook()
        chk_poison(g, MP, 12, k0, t4)
        g.L.pop()
        g.wait_vm(kk)
        g('v_max3_u32 v%d, v%d, v%d, v%d\nv_max3_u32 v%d, v%d, v%d, v%d\nv_cmp_eq_u32 vcc, -1, v%d',
          t4, t4, GR, GR + 1, t4, t4, GR + 2, GR + 3, t4)
    g.poll2(body, dma_a, P.slp_mb)
    g.stamp('mb')
    def sum_bf(dst, src, first):
        for d in range(4):
            if first is not None:
                g('v_dot2_f32_bf16 v%d, v%d, s%d, %s', dst + 2 * d, src + d, sKO, first)
                g('v_dot2_f32_bf16 v%d, v%d, s%d, %s', dst + 2 * d + 1, src + d, sLOC, first)
            else:
                g('v_dot2c_f32_bf16 v%d, s%d, v%d', dst + 2 * d, sKO, src + d)
                g('v_dot2c_f32_bf16 v%d, s%d, v%d', dst + 2 * d + 1, sLOC, src + d)
    nxt = P.gu_first
    for p in range(4):
        if nxt < 4: gu(nxt); nxt += 1
        elif nxt == 4: dma_d(); nxt += 1
        sum_bf(GA, MP + 12 * p, '0' if p == 0 else None)
        sum_bf(SB, MP + 12 * p + 4, '0' if p == 0 else None)
        sum_bf(C1, MP + 12 * p + 8, '1.0' if p == 0 else None)
    while nxt < 4: gu(nxt); nxt += 1
    if nxt == 4: dma_d()
    g.stamp('dma')
    for p in range(4):
        g('v_dot2_f32_bf16 v%d, v%d, s%d, %s', GBV, GR + p, sKO, '0' if p == 0 else 'v%d' % GBV)
        g('v_dot2_f32_bf16 v%d, v%d, s%d, %s', GBV + 1, GR + p, sLOC, '0' if p == 0 else 'v%d' % (GBV + 1))
    g.unpack8(X1, 4)
    g('v_bfe_u32 v%d, v1, 2, 2\nv_and_b32 v%d, 3, v1', t2, t4)
    vHW, vHR, vRW, vRR, vDO, vX1 = 100, 101, 102, 103, 104, 105
    g('s_mul_i32 s3, s%d, 1088\nv_add_u32 v%d, s3, v2', sW, vHW)
    g('v_mul_u32_u24 v%d, 1088, v%d\nv_lshl_add_u32 v%d, v%d, 4, v%d\ns_lshl_b32 s3, s%d, 8\nv_add_u32 v%d, s3, v%d', vHR, t4, vHR, t1, vHR, sW, vHR, vHR)
    g('v_lshl_add_u32 v%d, v%d, 2, v%d\nv_lshlrev_b32 v%d, 4, v%d\nv_add_u32 v%d, %d, v%d\ns_lshl_b32 s3, s%d, 9\nv_add_u32 v%d, s3, v%d', vRR, t4, t1, vRR, vRR, vRR, L_R, vRR, sW, vRW, vRR)
    g('v_lshlrev_b32 v%d, 10, v%d\nv_lshl_add_u32 v%d, v%d, 6, v%d\nv_lshl_add_u32 v%d, v%d, 4, v%d', vDO, t4, vDO, t2, vDO, vDO, t1, vDO)
    g('v_lshlrev_b32 v%d, 5, v1\ns_lshl_b32 s3, s%d, 11\ns_add_u32 s3, s3, %d\nv_add_u32 v%d, s3, v%d', vX1, sW, L_X1, vX1, vX1)
    MK = 106
    for tp in range(4):
        g('v_cmp_eq_u32 vcc, %d, v%d\nv_cndmask_b32 v%d, 0, -1, vcc', tp, t2, MK + tp)
    g('v_lshl_add_u32 v%d, v%d, 3, v%d\nv_lshlrev_b32 v%d, 5, v%d\nv_lshl_add_u32 v%d, v%d, 3, v%d', t0, t1, t2, t0, t0, t0, t4, t0)
    g('s_lshl_b32 s3, s%d, 13\ns_add_u32 s3, s3, %d\nv_add_u32 v%d, s3, v%d', sW, L_G, t0, t0)
    g('v_lshl_add_u32 v%d, v%d, 2, v%d\nv_lshlrev_b32 v%d, 8, v%d\nv_lshl_add_u32 v%d, v%d, 6, v%d\nv_lshl_add_u32 v%d, v%d, 4, v%d', t5, t1, t2, t5, t5, t5, t2, t5, t5, t4, t5)
    g('s_lshl_b32 s3, s%d, 12\ns_add_u32 s3, s3, %d\nv_add_u32 v%d, s3, v%d', sW, L_D, t5, t5)
    g('s_waitcnt vmcnt(4)')
    g.stamp('wts')
    for mu in range(2):
        for ks in range(4):
            for u in range(2):
                r = GF + 16 * mu + 4 * ks + 2 * u
                g('ds_read_b64_tr_b16 v[%d:%d], v%d offset:%d', r, r + 1, t0, mu * 4096 + ks * 1024 + u * 128)
    g('s_waitcnt vmcnt(0)')
    for tp in range(4):
        if tp: g('v_xor_b32 v%d, %d, v%d', t3, tp << 6, t5)
        for t in range(2):
            r = DF + 4 * tp + 2 * t
            g('ds_read_b64_tr_b16 v[%d:%d], v%d offset:%d', r, r + 1, t3 if tp else t5, 8 * t)
    g('s_lshl_b32 s3, s%d, 10\ns_add_u32 s3, s3, 0x%x', sW, XB)
    g.stamp('prep')
    if P.can_x: canary_wait(g, CANX, 4)
    g.stamp('canx')
    AO = 144
    def body():
        k0 = g.vm
        for p in range(8):
            g('s_add_u32 s%d, s3, %d', sT1, p * 4096)
            g.vmem('buffer_load_dwordx4 v[%d:%d], v2, %s, s%d offen sc1', XP + 4 * p, XP + 4 * p + 3, q(WS), sT1)
        for p in range(8):
            g.wait_vm(k0 + p)
            sum_bf(AO, XP + 4 * p, '0' if p == 0 else None)
            if p == 1: g('v_max_u32 v%d, v%d, v%d', t3, XP + 3, XP + 7)
            elif p > 1 and p & 1: g('v_max3_u32 v%d, v%d, v%d, v%d', t3, t3, XP + 4 * p - 1, XP + 4 * p + 3)
        g('v_cmp_eq_u32 vcc, -1, v%d', t3)
    g.poll(body, P.slp_x)
    g.stamp('xb')
    for i in range(0, 8, 2): g('v_pk_fma_f32 v[%d:%d], v[%d:%d], v[%d:%d], v[%d:%d]', X1 + i, X1 + i + 1, GA + i, GA + i + 1, AO + i, AO + i + 1, X1 + i, X1 + i + 1)
    g('v_pk_mul_f32 v[152:153], v[%d:%d], v[%d:%d]\nv_pk_add_f32 v[154:155], v[%d:%d], v[%d:%d]', X1, X1 + 1, X1, X1 + 1, X1, X1 + 1, X1 + 2, X1 + 3)
    for i in range(2, 8, 2):
        g('v_pk_fma_f32 v[152:153], v[%d:%d], v[%d:%d], v[152:153]', X1 + i, X1 + i + 1, X1 + i, X1 + i + 1)
        if i > 2: g('v_pk_add_f32 v[154:155], v[154:155], v[%d:%d]', X1 + i, X1 + i + 1)
    g('v_add_f32 v152, v152, v153\nv_add_f32 v153, v154, v155')
    g('ds_write_b128 v%d, v[%d:%d]\nds_write_b128 v%d, v[%d:%d] offset:16', vX1, X1, X1 + 3, vX1, X1 + 4, X1 + 7)
    g.stamp('x1')
    g.allreduce('v_add_f32', [152, 153], 154)
    g('v_mul_f32 v154, 0x%x, v153\nv_mul_f32 v152, 0x%x, v152\nv_fma_f32 v152, -v154, v154, v152\nv_max_f32 v152, 0, v152\nv_add_f32 v152, 0x%x, v152\nv_rsq_f32 v156, v152', f2u(1 / 512), f2u(1 / 512), f2u(1e-5))
    g('v_mul_f32 v154, v154, v156\nv_sub_f32 v154, 0, v154')
    for i in range(0, 8, 2): g('v_pk_fma_f32 v[%d:%d], v[%d:%d], v[156:157], v[154:155] op_sel_hi:[1,0,0]', AO + i, AO + i + 1, X1 + i, X1 + i + 1)
    for i in range(0, 8, 2): g('v_pk_fma_f32 v[%d:%d], v[%d:%d], v[%d:%d], v[%d:%d]', AO + i, AO + i + 1, AO + i, AO + i + 1, C1 + i, C1 + i + 1, SB + i, SB + i + 1)
    for i in range(4): g('v_cvt_pk_bf16_f32 v%d, v%d, v%d', 152 + i, AO + 2 * i, AO + 2 * i + 1)
    g.stamp('ln')
    g('ds_write_b128 v%d, v[152:155]', vHW)
    g('s_waitcnt lgkmcnt(0)\ns_barrier')
    g.stamp('bar1')
    for ks in range(4): g('ds_read_b128 v[%d:%d], v%d offset:%d', XP + 4 * ks, XP + 4 * ks + 3, vHR, ks * 64)
    D = 160
    for ks in range(4):
        g('s_waitcnt lgkmcnt(%d)', 3 - ks)
        for t in range(2):
            g('v_mfma_f32_16x16x32_bf16 v[%d:%d], v[%d:%d], v[%d:%d], %s', D + 4 * t, D + 4 * t + 3, GF + 16 * t + 4 * ks, GF + 16 * t + 4 * ks + 3, XP + 4 * ks, XP + 4 * ks + 3,
              '0' if ks == 0 else 'v[%d:%d]' % (D + 4 * t, D + 4 * t + 3))
    g('s_lshl_b32 s3, s%d, 12\ns_lshl_b32 s%d, s%d, 8\ns_add_u32 s3, s3, s%d\ns_add_u32 s3, s3, 0x%x', sFG, sT1, sW, sT1, DB)
    g.execm(0x000f000f, 0x000f000f)
    g('ds_write_b128 v%d, v[%d:%d]\nds_write_b128 v%d, v[%d:%d] offset:256', vRW, D, D + 3, vRW, D + 4, D + 7)
    g.execm(0xffffffff, 0xffffffff)
    g.stamp('mm')
    g('s_waitcnt lgkmcnt(0)\ns_barrier')
    g.stamp('bar2')
    for w in range(4):
        for mu in range(2): g('ds_read_b128 v[%d:%d], v%d offset:%d', XP + 8 * w + 4 * mu, XP + 8 * w + 4 * mu + 3, vRR, w * 512 + mu * 256)
    for w in range(1, 4):
        g('s_waitcnt lgkmcnt(%d)', 6 - 2 * w)
        for i in range(0, 8, 2): g('v_pk_add_f32 v[%d:%d], v[%d:%d], v[%d:%d]', XP + i, XP + i + 1, XP + i, XP + i + 1, XP + 8 * w + i, XP + 8 * w + i + 1)
    for i in range(4): g('v_mul_f32 v%d, 0x%x, v%d', XP + i, f2u(-math.log2(math.e)), XP + i)
    for i in range(4): g('v_exp_f32 v%d, v%d', XP + i, XP + i)
    for i in range(4): g('v_add_f32 v%d, 1.0, v%d', XP + i, XP + i)
    for i in range(4): g('v_rcp_f32 v%d, v%d', XP + i, XP + i)
    for i in range(4): g('v_mul_f32 v%d, v%d, v%d', XP + i, XP + i, XP + 4 + i)
    g('v_cvt_pk_bf16_f32 v%d, v%d, v%d\nv_cvt_pk_bf16_f32 v%d, v%d, v%d', XP + 8, XP, XP + 1, XP + 9, XP + 2, XP + 3)
    g.stamp('sig')
    for tp in range(4): g('v_and_b32 v%d, v%d, v%d\nv_and_b32 v%d, v%d, v%d', XP + 10 + 2 * tp, MK + tp, XP + 8, XP + 11 + 2 * tp, MK + tp, XP + 9)
    for tp in range(4):
        for t in range(2):
            g('v_mfma_f32_16x16x16_bf16 v[%d:%d], v[%d:%d], v[%d:%d], %s', D + 4 * t, D + 4 * t + 3, DF + 4 * tp + 2 * t, DF + 4 * tp + 2 * t + 1, XP + 10 + 2 * tp, XP + 11 + 2 * tp,
              '0' if tp == 0 else 'v[%d:%d]' % (D + 4 * t, D + 4 * t + 3))
    g.pack8(152, D)
    g('buffer_store_dwordx4 v[152:155], v%d, %s, s3 offen sc1', vDO, q(WS))
    g.stamp('S6')
    g('s_cmp_ge_u32 s%d, 4\ns_cbranch_scc1 L_Aend', sJ)
    g('s_mov_b64 s[%d:%d], s[%d:%d]\ns_mov_b32 s%d, 0x%x\ns_mov_b32 s%d, 0x20000', WSD, WSD + 1, WS, WS + 1, WSD + 2, DBEND, WSD + 3)
    g('s_mov_b64 s[%d:%d], s[%d:%d]\ns_mov_b32 s%d, 4096', G0, G0 + 1, pOUT, pOUT + 1, G0 + 2)
    g('v_lshrrev_b32 v%d, 3, v1\nv_lshlrev_b32 v%d, 12, v%d\nv_and_b32 v%d, 7, v1\nv_lshl_add_u32 v%d, v%d, 4, v%d', t0, t0, t0, t1, t0, t1, t0)
    g('s_lshl_b32 s3, s%d, 15\ns_lshl_b32 s%d, s%d, 10\ns_add_u32 s3, s3, s%d\ns_lshl_b32 s%d, s%d, 7\ns_add_u32 s3, s3, s%d\ns_add_u32 s3, s3, 0x%x', sW, sT1, sJ, sT1, sT1, sX, sT1, DB)
    g('v_lshlrev_b32 v%d, 3, v1\nv_add_u32 v%d, %d, v%d\ns_lshl_b32 s%d, s%d, 9\nv_add_u32 v%d, s%d, v%d', t1, t1, L_Z, t1, sT1, sW, t2, sT1, t1)
    g('s_lshl_b32 s%d, s%d, 11\ns_lshl_b32 s%d, s%d, 8\ns_add_u32 s%d, s%d, s%d\ns_add_u32 s%d, s%d, %d', sT1, sJ, sT2, sX, sT1, sT1, sT2, sT1, sT1, L_X1)
    g('v_lshlrev_b32 v%d, 2, v%d\nv_add_u32 v%d, s%d, v%d\nds_read_b64 v[96:97], v%d', t4, vFC, t4, sT1, t4, t4)
    if P.ack_d: g('s_waitcnt vmcnt(0)')
    g.stamp('ack')
    def body():
        k0 = g.vm
        for i in range(4):
            g('s_add_u32 s%d, s3, %d', sT1, i * 131072)
            g.vmem('buffer_load_dwordx4 v[%d:%d], v%d, %s, s%d offen sc1', XP + 4 * i, XP + 4 * i + 3, t0, q(WSD), sT1)
        for i in range(4):
            g.wait_vm(k0 + i)
            sum_bf(AO, XP + 4 * i, '0' if i == 0 else None)
        g('v_max3_u32 v%d, v%d, v%d, v%d\nv_max_u32 v%d, v%d, v%d\nv_cmp_eq_u32 vcc, -1, v%d', t3, XP + 3, XP + 7, XP + 11, t3, t3, XP + 15, t3)
    g.poll(body, P.slp_d)
    g.stamp('db')
    for i in range(4): g('v_permlane32_swap_b32 v%d, v%d', AO + i, AO + 4 + i)
    for i in range(4): g('v_add_f32 v%d, v%d, v%d', AO + i, AO + i, AO + 4 + i)
    for i in range(2): g('v_permlane16_swap_b32 v%d, v%d', AO + i, AO + 2 + i)
    for i in range(2): g('v_add_f32 v%d, v%d, v%d', AO + i, AO + i, AO + 2 + i)
    for i in range(2): g('v_add_f32_dpp v%d, v%d, v%d row_ror:8 row_mask:0xf bank_mask:0xf', AO + i, AO + i, AO + i)
    g('ds_write_b64 v%d, v[%d:%d]', t2, AO, AO + 1)
    g('s_waitcnt lgkmcnt(0)\ns_barrier')
    g.stamp('bar3')
    g('s_cmp_lg_u32 s%d, 0\ns_cbranch_scc1 L_Aend', sW)
    for w in range(1, 4): g('ds_read_b64 v[%d:%d], v%d offset:%d', XP + 2 * w, XP + 2 * w + 1, t1, w * 512)
    g('s_lshl_b32 s3, s%d, 10\ns_lshl_b32 s%d, s%d, 7\ns_add_u32 s3, s3, s%d\nv_lshlrev_b32 v%d, 1, v%d', sJ, sT1, sX, sT1, t0, vFC)
    g('s_waitcnt lgkmcnt(0)')
    g('v_pk_add_f32 v[%d:%d], v[%d:%d], v[%d:%d]\nv_pk_add_f32 v[%d:%d], v[%d:%d], v[%d:%d]\nv_pk_add_f32 v[%d:%d], v[%d:%d], v[%d:%d]',
      AO, AO + 1, AO, AO + 1, XP + 2, XP + 3, XP + 4, XP + 5, XP + 4, XP + 5, XP + 6, XP + 7, AO, AO + 1, AO, AO + 1, XP + 4, XP + 5)
    g('v_pk_fma_f32 v[96:97], v[%d:%d], v[%d:%d], v[96:97]\nv_cvt_pk_bf16_f32 v96, v96, v97', GBV, GBV + 1, AO, AO + 1)
    g.execm(0x00ff00ff, 0x00ff00ff)
    g('buffer_store_dword v96, v%d, %s, s3 offen', t0, q(G0))
    g('s_cmp_lg_u32 s%d, 0\ns_cbranch_scc1 L_Aend', sA)
    g('s_mov_b64 exec, 1\nv_mov_b32 v96, s%d\nv_mov_b32 v97, 0', sT)
    g('buffer_store_dword v96, v97, %s, 0 offen', q(WS))
    g('L_Aend:')
    g.stamp('end')
    epilogue(g)
def build(fn):
    g = G()
    prologue(g)
    role_A(g)
    role_F(g)
    g('L_end:\ns_endpgm')
    lines = hazard.fix(g.L)
    body = '\n'.join(lines) + '\n'
    s = file_wrap(['; @launch grid=(256,1,1) block=(320,1,1) lds=163840'], [kernel_wrap(K + '_kernel', body, 256)])
    open(fn, 'w').write(s)
if __name__ == '__main__':
    fn = sys.argv[1] if len(sys.argv) > 1 else 'k.s'
    for kv in sys.argv[2:]:
        k, v = kv.split('='); setattr(P, k, tuple(int(c) for c in v.split(',')) if ',' in v else type(getattr(P, k))(int(v)))
    build(fn)
```
